```python
import torch

def _softmax(x, axis=-1):
    return torch.softmax(x, dim=axis)
def _gelu(x):
    return torch.nn.functional.gelu(x, approximate="tanh")
def _silu(x):
    return torch.nn.functional.silu(x)
def _sigmoid(x):
    return torch.sigmoid(x)
def _layernorm(x, axis=-1, eps=1e-5):
    m = x.mean(dim=axis, keepdim=True)
    v = x.var(dim=axis, keepdim=True, unbiased=False)
    return (x - m) / torch.sqrt(v + eps)
def _scatter_add(tgt, idx, src, axis=0):
    return tgt.clone().index_add_(axis, idx, src)
def _segment_sum(src, seg, n):
    out = torch.zeros((n,) + src.shape[1:], dtype=src.dtype)
    return out.index_add_(0, seg, src)
def _pad(x, pw):
    flat = tuple(v for pair in reversed(pw) for v in pair)
    return torch.nn.functional.pad(x, flat)

kernel_name = 'sequential_preLN__spectral_fnet__glu_gated_glu__prompt'

def setup_inputs():

    _w = (lambda a: (lambda t: t.to(torch.bfloat16) if t.is_floating_point() else t)(torch.as_tensor(a)))
    def _A_setup():
        B, S, D = 1, 2048, 640
        ns = torch.arange(S)[:, None] * torch.arange(S)[None, :]
        nd = torch.arange(D)[:, None] * torch.arange(D)[None, :]
        Ws_re = torch.cos(-2.0 * torch.pi * ns / S).to(float)
        Ws_im = torch.sin(-2.0 * torch.pi * ns / S).to(float)
        Wd_re = torch.cos(-2.0 * torch.pi * nd / D).to(float)
        Wd_im = torch.sin(-2.0 * torch.pi * nd / D).to(float)
        return {
            "x": _w((lambda *s: torch.randn(*s, dtype=torch.bfloat16) * 0.05)(B, S, D)),
            "dft_seq_re": _w(Ws_re),
            "dft_seq_im": _w(Ws_im),
            "dft_hid_re": _w(Wd_re),
            "dft_hid_im": _w(Wd_im),
        }
    _A_in = _A_setup()

    def _B_setup():
        B, S, D, F = 1, 2048, 640, 1728
        return {
            "x": _w((lambda *s: torch.randn(*s, dtype=torch.bfloat16) * 0.05)(B, S, D)),
            "w_gate": _w((lambda *s: torch.randn(*s, dtype=torch.bfloat16) * 1.6)(D, F)),
            "w_up": _w((lambda *s: torch.randn(*s, dtype=torch.bfloat16) * 0.8)(D, F)),
            "w_down": _w((lambda *s: torch.randn(*s, dtype=torch.bfloat16) * 0.8)(F, D)),
        }
    _B_in = _B_setup()

    return {
        "A_x": _A_in["x"],
        "A_dft_seq_re": _A_in["dft_seq_re"],
        "A_dft_seq_im": _A_in["dft_seq_im"],
        "A_dft_hid_re": _A_in["dft_hid_re"],
        "A_dft_hid_im": _A_in["dft_hid_im"],
        "B_x": _B_in["x"],
        "B_w_gate": _B_in["w_gate"],
        "B_w_up": _B_in["w_up"],
        "B_w_down": _B_in["w_down"],
    }

def reference(A_x, A_dft_seq_re, A_dft_seq_im, A_dft_hid_re, A_dft_hid_im, B_x, B_w_gate, B_w_up, B_w_down):
    def _A_ref(x, dft_seq_re, dft_seq_im, dft_hid_re, dft_hid_im):
        a = torch.einsum("bsd,ed->bse", x, dft_hid_re)
        b = torch.einsum("bsd,ed->bse", x, dft_hid_im)
        y = torch.einsum("ts,bse->bte", dft_seq_re, a) - torch.einsum("ts,bse->bte", dft_seq_im, b)
        return y

    def _B_ref(x, w_gate, w_up, w_down):
        g = torch.einsum("bsd,df->bsf", x, w_gate)
        u = torch.einsum("bsd,df->bsf", x, w_up)
        h = _sigmoid(g) * u
        return torch.einsum("bsf,fd->bsd", h, w_down)

    x = A_x
    h = x + _A_ref(_layernorm(x, axis=-1), A_dft_seq_re, A_dft_seq_im, A_dft_hid_re, A_dft_hid_im)
    h2 = h + _B_ref(_layernorm(h, axis=-1), B_w_gate, B_w_up, B_w_down)
    return h2
```

```python
import re

TRANS = ("v_exp_f32", "v_log_f32", "v_rcp_f32", "v_rsq_f32", "v_sqrt_f32", "v_sin_f32", "v_cos_f32",
         "v_rcp_iflag_f32", "v_exp_f16", "v_rcp_f16", "v_rsq_f16", "v_sqrt_f16", "v_sin_f16", "v_cos_f16")

def regs_of(tok):
    tok = tok.strip()
    tok = re.sub(r"^-", "", tok)
    m = re.match(r"^abs\((.*)\)$", tok)
    if m: tok = m.group(1)
    m = re.match(r"^\|(.*)\|$", tok)
    if m: tok = m.group(1)
    m = re.match(r"^([vas])\[(\d+):(\d+)\]$", tok)
    if m:
        return {(m.group(1), i) for i in range(int(m.group(2)), int(m.group(3)) + 1)}
    m = re.match(r"^([vas])(\d+)$", tok)
    if m:
        return {(m.group(1), int(m.group(2)))}
    if tok in ("vcc", "vcc_lo", "vcc_hi"): return {("s", 106), ("s", 107)}
    if tok in ("exec", "exec_lo", "exec_hi"): return {("s", 126), ("s", 127)}
    if tok == "m0": return {("s", 124)}
    return set()

def split_ops(s):
    ops, depth, cur = [], 0, ""
    for ch in s:
        if ch in "[(": depth += 1
        if ch in "])": depth -= 1
        if ch == "," and depth == 0:
            ops.append(cur.strip()); cur = ""
        else:
            cur += ch
    if cur.strip(): ops.append(cur.strip())
    return ops

class Ins:
    __slots__ = ("mn", "kind", "dst", "src", "passes", "srcC", "dpp", "states", "stdata", "lds_dma")

def mfma_passes(mn):
    if "32x32x16" in mn or "32x32x8" in mn: return 8
    if "16x16x32" in mn or "16x16x16" in mn: return 4
    if "4x4" in mn: return 2
    raise ValueError(mn)

def parse(text):
    t = text.split(";")[0].strip()
    m = re.match(r"^(\S+)\s*(.*)$", t)
    mn, rest = m.group(1), m.group(2)
    ops = split_ops(rest)
    mods = ""
    if ops:
        last = ops[-1].split()
        if len(last) > 1 and not last[0].startswith("vmcnt") and not last[0].startswith("lgkmcnt"):
            ops[-1] = last[0]; mods = " ".join(last[1:])
    I = Ins(); I.mn = mn; I.dst = set(); I.src = set(); I.passes = 0; I.srcC = set(); I.dpp = False
    I.states = 1; I.stdata = set(); I.lds_dma = False
    R = [regs_of(o) for o in ops]
    if mn == "s_nop":
        I.kind = "nop"; I.states = int(ops[0], 0) + 1
    elif mn.startswith("v_mfma"):
        I.kind = "mfma"; I.passes = mfma_passes(mn); I.dst = R[0]; I.src = R[1] | R[2] | R[3]; I.srcC = R[3]
    elif mn.startswith("buffer_store") or mn.startswith("global_store"):
        I.kind = "vmem"; I.src = set().union(*R)
        if "x4" in mn or "x3" in mn:
            I.stdata = R[0] if mn.startswith("buffer") else R[1]
    elif mn.startswith("buffer_load") or mn.startswith("global_load"):
        I.kind = "vmem"
        if re.search(r"\blds\b", mods) or "_lds_" in mn:
            I.src = set().union(*R) | {("s", 124)}; I.lds_dma = True
        else:
            I.dst = R[0]; I.src = set().union(*R[1:])
    elif mn.startswith("buffer_atomic") or mn.startswith("global_atomic"):
        I.kind = "vmem"; I.src = set().union(*R)
    elif mn.startswith("ds_write") or mn.startswith("ds_store"):
        I.kind = "ds"; I.src = set().union(*R)
    elif mn.startswith("ds_"):
        I.kind = "ds"; I.dst = R[0]; I.src = set().union(*R[1:]) if len(R) > 1 else set()
    elif mn.startswith("s_load") or mn.startswith("s_memtime") or mn.startswith("s_memrealtime"):
        I.kind = "smem"; I.dst = R[0]; I.src = set().union(*R[1:]) if len(R) > 1 else set()
    elif mn.startswith("s_"):
        I.kind = "salu"
        if mn.startswith(("s_cmp", "s_waitcnt", "s_barrier", "s_branch", "s_cbranch", "s_endpgm", "s_setprio", "s_sleep", "s_bitcmp")):
            I.src = set().union(*R) if R else set()
        else:
            I.dst = R[0]; I.src = set().union(*R[1:]) if len(R) > 1 else set()
            if "saveexec" in mn: I.dst = I.dst | {("s", 126), ("s", 127)}
    elif mn.startswith("v_"):
        I.kind = "valu"
        if mn.startswith("v_cmpx"):
            I.dst = R[0] | {("s", 126), ("s", 127)}; I.src = set().union(*R[1:])
        elif mn.startswith(("v_add_co", "v_sub_co", "v_addc_co", "v_subb_co", "v_subrev_co", "v_div_scale", "v_mad_u64")):
            I.dst = R[0] | R[1]; I.src = set().union(*R[2:])
        elif "permlane" in mn and "swap" in mn:
            I.dst = R[0] | R[1]; I.src = R[0] | R[1]
        else:
            I.dst = R[0]; I.src = set().union(*R[1:]) if len(R) > 1 else set()
            if mn.startswith(("v_fmac", "v_pk_fmac", "v_dot2c", "v_dot4c", "v_mac")): I.src = I.src | R[0]
            if mn.startswith("v_cndmask") and len(ops) == 3: I.src = I.src | {("s", 106), ("s", 107)}
        if "quad_perm" in mods or "row_" in mods or "_dpp" in mn or "wave_" in mods: I.dpp = True
    else:
        raise ValueError("unknown instr: " + text)
    return I

MFMA_RAW = {2: 5, 4: 8, 8: 12, 16: 20}
MFMA_WARC = {2: 1, 4: 3, 8: 7, 16: 15}

def need(p, c):
    n = 0
    csrc_v = {r for r in c.src if r[0] in "va"}
    if p.kind == "valu":
        pv = {r for r in p.dst if r[0] in "va"}
        ps = {r for r in p.dst if r[0] == "s"}
        if c.kind == "mfma" and pv & c.src: n = max(n, 2)
        if c.kind == "valu":
            if p.mn.split("_e")[0] in TRANS and c.mn.split("_e")[0] not in TRANS and pv & c.src: n = max(n, 1)
            if c.mn.startswith(("v_readfirstlane", "v_readlane")) and pv & c.src: n = max(n, 1)
            if (c.dpp or "permlane" in c.mn) and pv & c.src: n = max(n, 2)
            if ps & c.src: n = max(n, 2)
            if c.dpp and ("s", 126) in ps: n = max(n, 5)
            if c.mn.startswith(("v_readlane", "v_writelane", "v_readfirstlane")) and ("s", 126) in ps: n = max(n, 4)
        if c.kind == "mfma" and ("s", 126) in ps: n = max(n, 4)
        if c.kind == "vmem" and ps & c.src: n = max(n, 5)
    if p.kind == "mfma":
        if c.kind == "mfma":
            ab = c.src - c.srcC
            if p.dst & ab: n = max(n, MFMA_RAW[p.passes])
            if p.dst & c.srcC:
                if not (p.dst == c.srcC and p.passes == c.passes): n = max(n, MFMA_RAW[p.passes] - 2)
                elif p.passes == 2: n = max(n, 2)
        else:
            if p.dst & (c.src | c.dst): n = max(n, MFMA_RAW[p.passes])
            if c.kind == "valu" and p.srcC & c.dst: n = max(n, MFMA_WARC[p.passes])
    if p.kind == "salu" and ("s", 124) in p.dst and c.lds_dma: n = max(n, 1)
    if p.stdata and c.kind in ("valu", "ds", "vmem") and p.stdata & c.dst: n = max(n, 2)
    return n

class Asm:
    def __init__(self):
        self.out = []
        self.hist = []
        self.vm = []
    def raw(self, s):
        self.out.append(s)
    def label(self, l):
        self.out.append(f"{l}:")
    def __call__(self, text, tag=None):
        for line in text.strip().split("\n"):
            line = line.strip()
            if not line or line.startswith(";"):
                if line: self.out.append("    " + line)
                continue
            if line.endswith(":"):
                self.label(line[:-1]); continue
            c = parse(line)
            dist = 0; pad = 0
            for p in reversed(self.hist):
                r = need(p, c)
                if r > dist: pad = max(pad, r - dist)
                dist += p.states
                if dist > 24: break
            while pad > 0:
                k = min(pad, 16)
                self.out.append(f"    s_nop {k-1}")
                n = parse(f"s_nop {k-1}"); self.hist.append(n); pad -= k
            self.out.append("    " + line)
            self.hist.append(c)
            if len(self.hist) > 64: self.hist = self.hist[-40:]
            if c.kind == "vmem": self.vm.append(tag)
    def wait_vm(self, tags, extra=""):
        last = -1
        for i, t in enumerate(self.vm):
            if t in tags: last = i
        if last < 0:
            if extra: self(f"s_waitcnt {extra}")
            return
        n = len(self.vm) - 1 - last
        assert n <= 63, n
        self(f"s_waitcnt vmcnt({n}) {extra}".strip())
        self.vm = self.vm[last + 1:]
    def wait_vm_all(self, extra=""):
        self(f"s_waitcnt vmcnt(0) {extra}".strip()); self.vm = []
    def text(self):
        return "\n".join(self.out) + "\n"

def kernel_header(name):
    return f""".globl {name}
.p2align 8
.type {name},@function
{name}:
"""
def kernel_desc(name, vgpr, agpr=0, sgpr=96):
    acc = (vgpr + 3) // 4 * 4
    nfv = acc + agpr if agpr else vgpr
    return f""".amdhsa_kernel {name}
  .amdhsa_next_free_vgpr {nfv}
  .amdhsa_next_free_sgpr {sgpr}
  .amdhsa_accum_offset {acc}
  .amdhsa_group_segment_fixed_size 0
  .amdhsa_kernarg_size 96
  .amdhsa_user_sgpr_count 2
  .amdhsa_user_sgpr_kernarg_segment_ptr 1
  .amdhsa_system_sgpr_workgroup_id_x 1
  .amdhsa_float_denorm_mode_32 3
  .amdhsa_float_denorm_mode_16_64 3
.end_amdhsa_kernel
"""
```

```python
from dsl import *

WS_U = 0x0
WS_H = 0x280000
WS_LN2 = 0x500000
WS_WGU = 0x780000
WS_WD = 0xBC0000
WS_HH = 0xE00000
SZ_ACT = 2048 * 640 * 2
SZ_WGU = 108 * 40 * 1024
SZ_WD = 40 * 54 * 1024
SZ_HH = 128 * 54 * 1024

def srd(a, d, base_lo, base_hi, off, size):
    if off:
        a(f"s_add_u32 s{d}, s{base_lo}, {off}")
        a(f"s_addc_u32 s{d+1}, s{base_hi}, 0")
    else:
        a(f"s_mov_b32 s{d}, s{base_lo}")
        a(f"s_mov_b32 s{d+1}, s{base_hi}")
    a(f"s_mov_b32 s{d+2}, {size}")
    a(f"s_mov_b32 s{d+3}, 0x00020000")

WS_DBG = 0x2000000
PROF = False
def stamp(a, i):
    if PROF:
        a(f"s_memtime s[{60+2*i}:{61+2*i}]")
        if i == 0: a("s_memrealtime s[90:91]")
def stamp_flush(a, n, ws_lo, ws_hi):
    if not PROF: return
    a("s_memrealtime s[80:81]")
    a("s_waitcnt lgkmcnt(0)")
    srd(a, 84, ws_lo, ws_hi, WS_DBG, 1 << 20)
    a("v_lshrrev_b32 v1, 6, v0")
    a("s_lshl_b32 s82, s2, 2")
    a("v_add_u32 v1, s82, v1")
    a("v_lshlrev_b32 v1, 6, v1")
    for i in range(n):
        a(f"v_mov_b32 v2, s{60+2*i}")
        a(f"buffer_store_dword v2, v1, s[84:87], 0 offen offset:{4*i}")
    a("v_mov_b32 v2, s80")
    a("buffer_store_dword v2, v1, s[84:87], 0 offen offset:60")
    a("v_mov_b32 v2, s90")
    a("buffer_store_dword v2, v1, s[84:87], 0 offen offset:56")

def prep_body(a, wg_sreg, end_label, lds_base=0):
    a("s_load_dwordx4 s[4:7], s[0:1], 48")
    a("s_load_dwordx2 s[8:9], s[0:1], 64")
    a("s_load_dwordx2 s[10:11], s[0:1], 88")
    a("v_lshrrev_b32 v1, 6, v0")
    a("v_and_b32 v2, 63, v0")
    a("v_readfirstlane_b32 s12, v1")
    a(f"s_lshl_b32 s13, s{wg_sreg}, 2")
    a("s_add_u32 s13, s13, s12")
    a(f"s_cmp_ge_u32 s13, 1620")
    a(f"s_cbranch_scc1 {end_label}")
    a("s_mul_i32 s14, s12, 4864")
    if lds_base: a(f"s_add_u32 s14, s14, {lds_base}")
    a("v_lshrrev_b32 v3, 3, v2")
    a("v_and_b32 v4, 7, v2")
    a("v_lshlrev_b32 v4, 4, v4")
    a("v_mul_u32_u24 v5, 144, v3")
    a("v_add_u32 v5, v5, v4")
    a("v_add_u32 v5, s14, v5")
    a("v_lshrrev_b32 v6, 4, v2")
    a("v_bfe_u32 v7, v2, 2, 2")
    a("v_and_b32 v8, 3, v2")
    a("v_lshlrev_b32 v8, 3, v8")
    a("v_lshlrev_b32 v9, 4, v2")
    a("s_waitcnt lgkmcnt(0)")
    a("s_cmp_ge_u32 s13, 1080")
    a("s_cbranch_scc1 L_prep_wd")
    srd(a, 16, 4, 5, 0, 640 * 1728 * 2)
    srd(a, 20, 6, 7, 0, 640 * 1728 * 2)
    srd(a, 24, 10, 11, WS_WGU, SZ_WGU)
    a("s_mul_i32 s28, s13, 52429")
    a("s_lshr_b32 s28, s28, 21")
    a("s_mul_i32 s29, s28, 40")
    a("s_sub_u32 s29, s13, s29")
    a("s_mul_i32 s30, s29, 55296")
    a("s_lshl_b32 s31, s28, 7")
    a("s_add_u32 s30, s30, s31")
    a("s_add_u32 s31, s30, 27648")
    a("v_mul_u32_u24 v10, 3456, v3")
    a("v_add_u32 v10, v10, v4")
    a("buffer_load_dwordx4 v[12:15], v10, s[16:19], s30 offen")
    a("buffer_load_dwordx4 v[16:19], v10, s[16:19], s31 offen")
    a("buffer_load_dwordx4 v[20:23], v10, s[20:23], s30 offen")
    a("buffer_load_dwordx4 v[24:27], v10, s[20:23], s31 offen")
    a("v_and_b32 v11, 1, v6")
    a("v_lshlrev_b32 v11, 4, v11")
    a("v_lshrrev_b32 v28, 1, v6")
    a("v_lshlrev_b32 v28, 3, v28")
    a("v_add3_u32 v11, v11, v28, v7")
    a("v_mul_u32_u24 v11, 144, v11")
    a("v_add3_u32 v11, v11, v8, s14")
    a("s_mul_i32 s32, s28, 160")
    a("s_add_u32 s32, s32, s29")
    a("s_lshl_b32 s32, s32, 10")
    a("s_waitcnt vmcnt(0)")
    a("ds_write_b128 v5, v[12:15]")
    a("ds_write_b128 v5, v[16:19] offset:1152")
    a("ds_write_b128 v5, v[20:23] offset:2304")
    a("ds_write_b128 v5, v[24:27] offset:3456")
    a("s_waitcnt lgkmcnt(0)")
    for u in range(4):
        a(f"ds_read_b64_tr_b16 v[{12+4*u}:{13+4*u}], v11 offset:{32*u}")
        a(f"ds_read_b64_tr_b16 v[{14+4*u}:{15+4*u}], v11 offset:{32*u+576}")
    for u in range(4):
        a(f"s_waitcnt lgkmcnt({6-2*u})")
        a(f"buffer_store_dwordx4 v[{12+4*u}:{15+4*u}], v9, s[24:27], s32 offen")
        if u < 3: a("s_add_u32 s32, s32, 40960")
    a(f"s_branch {end_label}")
    a.label("L_prep_wd")
    srd(a, 16, 8, 9, 0, 1728 * 640 * 2)
    srd(a, 24, 10, 11, WS_WD, SZ_WD)
    a("s_sub_u32 s13, s13, 1080")
    a("s_mul_i32 s28, s13, 38837")
    a("s_lshr_b32 s28, s28, 21")
    a("s_mul_i32 s29, s28, 54")
    a("s_sub_u32 s29, s13, s29")
    a("s_mul_i32 s30, s29, 40960")
    a("s_lshl_b32 s31, s28, 7")
    a("s_add_u32 s30, s30, s31")
    a("s_add_u32 s31, s30, 10240")
    a("s_add_u32 s33, s30, 20480")
    a("s_add_u32 s34, s30, 30720")
    a("v_mul_u32_u24 v10, 1280, v3")
    a("v_add_u32 v10, v10, v4")
    a("buffer_load_dwordx4 v[12:15], v10, s[16:19], s30 offen")
    a("buffer_load_dwordx4 v[16:19], v10, s[16:19], s31 offen")
    a("buffer_load_dwordx4 v[20:23], v10, s[16:19], s33 offen")
    a("buffer_load_dwordx4 v[24:27], v10, s[16:19], s34 offen")
    a("v_lshrrev_b32 v11, 1, v6")
    a("v_lshlrev_b32 v11, 4, v11")
    a("v_and_b32 v28, 1, v6")
    a("v_lshlrev_b32 v28, 2, v28")
    a("v_add3_u32 v11, v11, v28, v7")
    a("v_mul_u32_u24 v11, 144, v11")
    a("v_add3_u32 v11, v11, v8, s14")
    a("s_mul_i32 s32, s28, 216")
    a("s_add_u32 s32, s32, s29")
    a("s_lshl_b32 s32, s32, 10")
    a("s_waitcnt vmcnt(0)")
    a("ds_write_b128 v5, v[12:15]")
    a("ds_write_b128 v5, v[16:19] offset:1152")
    a("ds_write_b128 v5, v[20:23] offset:2304")
    a("ds_write_b128 v5, v[24:27] offset:3456")
    a("s_waitcnt lgkmcnt(0)")
    for u in range(4):
        a(f"ds_read_b64_tr_b16 v[{12+4*u}:{13+4*u}], v11 offset:{32*u}")
        a(f"ds_read_b64_tr_b16 v[{14+4*u}:{15+4*u}], v11 offset:{32*u+1152}")
    for u in range(4):
        a(f"s_waitcnt lgkmcnt({6-2*u})")
        a(f"buffer_store_dwordx4 v[{12+4*u}:{15+4*u}], v9, s[24:27], s32 offen")
        if u < 3: a("s_add_u32 s32, s32, 55296")

def gen_prep(name="kp_kernel"):
    a = Asm()
    a.raw(kernel_header(name))
    prep_body(a, 2, "L_kp_end")
    a.label("L_kp_end")
    a("s_endpgm")
    return a.text(), kernel_desc(name, 32, 0, 48), f"; @launch kernel={name} grid=(405,1,1) block=(256,1,1) lds=19456"

def gen_kc(name="kc_kernel"):
    a = Asm()
    a.raw(kernel_header(name))
    NST = 10; NU = 7; SLOT = 28672; NSLOT = 4
    a("s_cmp_ge_u32 s2, 256")
    a("s_cbranch_scc1 L_kc_end")
    stamp(a, 0)
    a("s_load_dwordx2 s[4:5], s[0:1], 88")
    a("v_lshrrev_b32 v1, 6, v0")
    a("v_and_b32 v2, 63, v0")
    a("v_readfirstlane_b32 s6, v1")
    a("v_lshlrev_b32 v3, 4, v2")
    a("s_and_b32 s7, s2, 7")
    a("s_lshr_b32 s8, s2, 3")
    a("s_and_b32 s9, s7, 1")
    a("s_lshl_b32 s9, s9, 3")
    a("s_and_b32 s10, s8, 7")
    a("s_add_u32 s9, s9, s10")
    a("s_lshr_b32 s10, s7, 1")
    a("s_lshl_b32 s10, s10, 2")
    a("s_lshr_b32 s11, s8, 3")
    a("s_add_u32 s10, s10, s11")
    a("s_mul_i32 s10, s10, 27")
    a("s_lshr_b32 s10, s10, 2")
    a("s_lshl_b32 s9, s9, 2")
    a("s_add_u32 s9, s9, s6")
    a("s_waitcnt lgkmcnt(0)")
    srd(a, 12, 4, 5, WS_WGU, SZ_WGU)
    srd(a, 16, 4, 5, WS_LN2, SZ_ACT)
    srd(a, 20, 4, 5, WS_HH, SZ_HH)
    a("s_mul_i32 s11, s10, 40960")
    a("s_lshl_b32 s31, s6, 10")
    a("s_add_u32 s11, s11, s31")
    a("v_add_u32 v4, s11, v3")
    for u in range(NU):
        a(f"s_mov_b32 s{24+u}, {u*40960}")
    a("s_mul_i32 s32, s9, 40960")
    ACC = 8
    WB = 120
    LB = 5
    def dma(st):
        slot = st % NSLOT
        for u in range(NU):
            a(f"s_add_u32 m0, s31, {slot*SLOT + u*4096}")
            a(f"buffer_load_dwordx4 v4, s[12:15], s{24+u} offen lds", tag=("dma", st))
            a(f"s_add_u32 s{24+u}, s{24+u}, 4096")
    def dma_one(st, u):
        slot = st % NSLOT
        a(f"s_add_u32 m0, s31, {slot*SLOT + u*4096}")
        a(f"buffer_load_dwordx4 v4, s[12:15], s{24+u} offen lds", tag=("dma", st))
        a(f"s_add_u32 s{24+u}, s{24+u}, 4096")
    def act(k):
        if k % 4 == 0 and k > 0:
            a("s_add_u32 s32, s32, 4096")
        a(f"buffer_load_dwordx4 a[{4*k}:{4*k+3}], v3, s[16:19], s32 offen offset:{(k%4)*1024}", tag=("act", k // 4))
    dma(0)
    for k in range(0, 8): act(k)
    dma(1)
    for k in range(8, 24): act(k)
    dma(2)
    for k in range(24, 40): act(k)
    for r in range(NU * 16):
        a(f"v_mov_b32 v{ACC+r}, 0")
    def wread(st, kk, u):
        buf = (st * 4 + kk) % 2
        r = WB + buf * 28 + u * 4
        a(f"ds_read_b128 v[{r}:{r+3}], v{LB} offset:{(u*4+kk)*1024}")
    def mfma(st, kk, u):
        buf = (st * 4 + kk) % 2
        r = WB + buf * 28 + u * 4
        k = st * 4 + kk
        a(f"v_mfma_f32_32x32x16_bf16 v[{ACC+16*u}:{ACC+16*u+15}], v[{r}:{r+3}], a[{4*k}:{4*k+3}], v[{ACC+16*u}:{ACC+16*u+15}]")
    stamp(a, 1)
    a.wait_vm({("dma", 0), ("act", 0)})
    a("s_barrier")
    stamp(a, 2)
    a(f"v_mov_b32 v{LB}, v3")
    for u in range(NU): wread(0, 0, u)
    for st in range(NST):
        for kk in range(4):
            nst, nkk = (st, kk + 1) if kk < 3 else (st + 1, 0)
            has_next = nst < NST
            if kk == 3 and st in (2, 5, 8): stamp(a, 3 + st // 3)
            if kk == 3 and has_next:
                a.wait_vm({("dma", nst), ("act", nst)}, extra="lgkmcnt(0)")
                a("s_barrier")
                a(f"v_add_u32 v{LB}, {(nst % NSLOT) * SLOT}, v3")
            dlist = []
            if kk == 3 and st + 4 < NST + 0 and has_next:
                dlist = [(st + 4, u) for u in range(NU)]
            if st == 0 and kk == 0:
                dlist = [(3, u) for u in range(NU)]
            for u in range(NU):
                if kk != 3 or not has_next:
                    a(f"s_waitcnt lgkmcnt({min(15, (NU-1-u) + (u if has_next else 0))})") if True else None
                mfma(st, kk, u)
                if has_next: wread(nst, nkk, u)
                if dlist: dma_one(*dlist[u])
    stamp(a, 6)
    a("v_bfe_u32 v4, v2, 4, 1")
    a("v_mul_u32_u24 v4, 55296, v4")
    a("v_lshrrev_b32 v6, 5, v2")
    a("v_lshlrev_b32 v6, 8, v6")
    a("v_and_b32 v7, 15, v2")
    a("v_lshlrev_b32 v7, 4, v7")
    a("v_add3_u32 v4, v4, v6, v7")
    a("s_mul_i32 s33, s9, 110592")
    a("s_lshl_b32 s34, s10, 9")
    a("s_add_u32 s33, s33, s34")
    a("s_mov_b32 s34, 0xbfb8aa3b")
    T = WB
    for u in range(NU):
        g = ACC + 16 * u; up = g + 8
        t = T + (u % 2) * 16
        for r in range(8): a(f"v_mul_f32 v{t+r}, s34, v{g+r}")
        for r in range(8): a(f"v_exp_f32 v{t+r}, v{t+r}")
        for r in range(8): a(f"v_add_f32 v{t+r}, 1.0, v{t+r}")
        for r in range(8): a(f"v_rcp_f32 v{t+r}, v{t+r}")
        for r in range(8): a(f"v_mul_f32 v{t+r}, v{t+r}, v{up+r}")
        for r in range(4): a(f"v_cvt_pk_bf16_f32 v{t+8+r}, v{t+2*r}, v{t+2*r+1}")
        a(f"buffer_store_dwordx4 v[{t+8}:{t+11}], v4, s[20:23], s33 offen offset:{u*512}")
    stamp(a, 7)
    stamp_flush(a, 8, 4, 5)
    a.label("L_kc_end")
    a("s_endpgm")
    return a.text(), kernel_desc(name, 176, 160, 96), f"; @launch kernel={name} grid=(256,1,1) block=(256,1,1) lds={SLOT*NSLOT}"

def gen_kd(name="kd_kernel"):
    a = Asm()
    a.raw(kernel_header(name))
    P = 4; NS = 14
    a("s_cmp_ge_u32 s2, 256")
    a("s_cbranch_scc1 L_kd_end")
    stamp(a, 0)
    a("s_load_dwordx2 s[4:5], s[0:1], 88")
    a("s_load_dwordx2 s[36:37], s[0:1], 72")
    a("v_lshrrev_b32 v1, 6, v0")
    a("v_and_b32 v2, 63, v0")
    a("v_readfirstlane_b32 s6, v1")
    a("v_lshlrev_b32 v3, 4, v2")
    a("s_and_b32 s7, s2, 7")
    a("s_lshr_b32 s8, s2, 3")
    a("s_and_b32 s9, s7, 3")
    a("s_lshl_b32 s9, s9, 3")
    a("s_and_b32 s10, s8, 7")
    a("s_add_u32 s9, s9, s10")
    a("s_lshr_b32 s10, s7, 2")
    a("s_lshl_b32 s10, s10, 2")
    a("s_lshr_b32 s11, s8, 3")
    a("s_add_u32 s10, s10, s11")
    a("s_mul_i32 s11, s6, 14")
    a("s_cmp_eq_u32 s6, 3")
    a("s_cselect_b32 s32, 1, 0")
    a("s_sub_u32 s11, s11, s32")
    a("s_lshl_b32 s11, s11, 10")
    a("s_waitcnt lgkmcnt(0)")
    srd(a, 12, 4, 5, WS_WD, SZ_WD)
    srd(a, 16, 4, 5, WS_HH, SZ_HH)
    srd(a, 20, 4, 5, WS_H, SZ_ACT)
    srd(a, 24, 36, 37, 0, SZ_ACT)
    a("s_mul_i32 s28, s10, 276480")
    a("s_mul_i32 s29, s9, 221184")
    for cu in range(5):
        a(f"v_add_u32 v{4+cu}, s28, v3")
        if cu < 4: a("s_add_u32 s28, s28, 55296")
    for rt in range(4):
        a(f"v_add_u32 v{9+rt}, s29, v3")
        if rt < 3: a("s_add_u32 s29, s29, 55296")
    ACC = 16
    BUF = 96
    def load(st, i):
        b = BUF + (st % P) * 36
        if st % 4 == 0 and i == 0 and st > 0:
            a("s_add_u32 s11, s11, 4096")
        off = (st % 4) * 1024
        if i < 5:
            a(f"buffer_load_dwordx4 v[{b+4*i}:{b+4*i+3}], v{4+i}, s[12:15], s11 offen offset:{off}", tag=st)
        else:
            rt = i - 5
            a(f"buffer_load_dwordx4 v[{b+20+4*rt}:{b+20+4*rt+3}], v{9+rt}, s[16:19], s11 offen offset:{off}", tag=st)
    for st in range(P - 1):
        for i in range(9): load(st, i)
    for r in range(80): a(f"v_mov_b32 v{ACC+r}, 0")
    a("v_and_b32 v13, 15, v2")
    a("s_lshl_b32 s30, s9, 6")
    a("s_lshl_b32 s31, s6, 4")
    a("s_add_u32 s30, s30, s31")
    a("v_add_u32 v13, s30, v13")
    a("v_mul_u32_u24 v13, 1280, v13")
    a("v_lshrrev_b32 v14, 4, v2")
    a("v_lshlrev_b32 v14, 3, v14")
    a("s_mul_i32 s31, s10, 160")
    a("v_add3_u32 v13, v13, v14, s31")
    for st in range(NS):
        b = BUF + (st % P) * 36
        if st == NS - 1:
            a.wait_vm({st})
            a("s_cmp_ge_u32 s6, 2")
            a("s_cbranch_scc1 L_kd_skip")
        else:
            if st == 0: stamp(a, 1)
            a.wait_vm({st})
            if st in (0, 4, 8, 12): stamp(a, 2 + st // 4)
        n = 0
        for cu in range(5):
            for rt in range(4):
                t = ACC + (cu * 4 + rt) * 4
                a(f"v_mfma_f32_16x16x32_bf16 v[{t}:{t+3}], v[{b+4*cu}:{b+4*cu+3}], v[{b+20+4*rt}:{b+20+4*rt+3}], v[{t}:{t+3}]")
                if n % 2 == 0 and n // 2 < 9 and st + P - 1 < NS:
                    load(st + P - 1, n // 2)
                n += 1
    a.label("L_kd_skip")
    stamp(a, 6)
    HB = BUF
    a("s_nop 7")
    for cu in range(5):
        a(f"buffer_load_dwordx2 v[{HB+2*cu}:{HB+2*cu+1}], v13, s[20:23], 0 offen offset:{32*cu}", tag="h")
    for o in range(4):
        a(f"s_cmp_eq_u32 s6, {o}")
        a(f"s_cbranch_scc1 L_kd_w{o}")
        a(f"s_sub_u32 s32, s6, {o+1}")
        a("s_and_b32 s32, s32, 3")
        a("s_mul_i32 s32, s32, 5120")
        a(f"s_add_u32 s32, s32, {o*15360}")
        a("v_add_u32 v14, s32, v3")
        for cu in range(5):
            t = ACC + (cu * 4 + o) * 4
            a(f"ds_write_b128 v14, v[{t}:{t+3}] offset:{cu*1024}")
        a.label(f"L_kd_w{o}")
    a("s_waitcnt lgkmcnt(0)")
    a("s_barrier")
    a("s_mul_i32 s32, s6, 15360")
    a("v_add_u32 v14, s32, v3")
    RB = 112
    for k in range(3):
        for cu in range(5):
            r = RB + (k * 5 + cu) * 4
            a(f"ds_read_b128 v[{r}:{r+3}], v14 offset:{(k*5+cu)*1024}")
    OWN = 176
    for w in range(4):
        a(f"s_cmp_lg_u32 s6, {w}")
        a(f"s_cbranch_scc1 L_kd_o{w}")
        for cu in range(5):
            t = ACC + (cu * 4 + w) * 4
            for r in range(4): a(f"v_mov_b32 v{OWN+cu*4+r}, v{t+r}")
        a.label(f"L_kd_o{w}")
    a("s_waitcnt lgkmcnt(0)")
    for k in range(3):
        for cu in range(5):
            r = RB + (k * 5 + cu) * 4
            for q in range(4): a(f"v_add_f32 v{OWN+cu*4+q}, v{OWN+cu*4+q}, v{r+q}")
    a.wait_vm({"h"})
    for cu in range(5):
        o = OWN + cu * 4; h = HB + 2 * cu; t = RB + cu * 8
        a(f"v_cvt_pk_bf16_f32 v{t}, v{o}, v{o+1}")
        a(f"v_cvt_pk_bf16_f32 v{t+1}, v{o+2}, v{o+3}")
        a(f"v_lshlrev_b32 v{t+2}, 16, v{t}")
        a(f"v_and_b32 v{t+3}, 0xffff0000, v{t}")
        a(f"v_lshlrev_b32 v{t+4}, 16, v{t+1}")
        a(f"v_and_b32 v{t+5}, 0xffff0000, v{t+1}")
        a(f"v_lshlrev_b32 v{o}, 16, v{h}")
        a(f"v_and_b32 v{o+1}, 0xffff0000, v{h}")
        a(f"v_lshlrev_b32 v{o+2}, 16, v{h+1}")
        a(f"v_and_b32 v{o+3}, 0xffff0000, v{h+1}")
        for q in range(4): a(f"v_add_f32 v{o+q}, v{o+q}, v{t+2+q}")
        a(f"v_cvt_pk_bf16_f32 v{t}, v{o}, v{o+1}")
        a(f"v_cvt_pk_bf16_f32 v{t+1}, v{o+2}, v{o+3}")
        a(f"buffer_store_dwordx2 v[{t}:{t+1}], v13, s[24:27], 0 offen offset:{32*cu}")
    stamp(a, 7)
    stamp_flush(a, 8, 4, 5)
    a.label("L_kd_end")
    a("s_endpgm")
    return a.text(), kernel_desc(name, 240, 0, 96), f"; @launch kernel={name} grid=(256,1,1) block=(256,1,1) lds=61440"

def assemble(parts):
    s = "\n".join(p[2] for p in parts) + "\n"
    s += '.amdgcn_target "amdgcn-amd-amdhsa--gfx950"\n.text\n'
    for p in parts: s += p[0]
    s += '.section .rodata,"a"\n'
    for p in parts: s += ".p2align 6\n" + p[1]
    return s

if __name__ == "__main__":
    import sys
    if len(sys.argv) > 2: PROF = True
    open(sys.argv[1], "w").write(assemble([gen_prep(), gen_kc(), gen_kd()]))
```

```python
import numpy as np, struct
from dsl import *
import gen_gemm as G
from gen_gemm import srd, WS_U, WS_H, WS_LN2, SZ_ACT, stamp, stamp_flush

def f16bits(x):
    return int(np.float16(x).view(np.uint16))
def pack_f16(vals):
    return [f16bits(vals[2*i]) | (f16bits(vals[2*i+1]) << 16) for i in range(len(vals)//2)]
def f32bits(x):
    return int(np.float32(x).view(np.uint32))
def emit_table(label, dwords):
    s = f".p2align 8\n{label}:\n"
    for i in range(0, len(dwords), 8):
        s += ".long " + ", ".join(f"0x{d:08x}" for d in dwords[i:i+8]) + "\n"
    return s

def klist16(g, ks):
    return [32*ks + 4*g + j for j in range(4)] + [32*ks + 16 + 4*g + j for j in range(4)]

def ka_table():
    d = []
    for w in range(4):
        for ks in range(2):
            for l in range(64):
                n, g = l % 16, l // 16
                r = 16*w + n; gs, ri = r // 2, r % 2
                vals = []
                for s1 in klist16(g, ks):
                    if gs == 0: v = 1.0 if ri == 0 else (-1.0)**s1
                    else:
                        ang = 2*np.pi*((gs*s1) % 64)/64
                        v = np.cos(ang) if ri == 0 else -np.sin(ang)
                    vals.append(v)
                d += pack_f16(vals)
    return d

def bf16r(a, dst, src):
    a(f"v_cvt_pk_bf16_f32 v{dst}, v{src}, v{src}")
    a(f"v_lshlrev_b32 v{dst}, 16, v{dst}")

def gen_ka(name="ka_kernel", with_prep=True):
    a = Asm()
    a.raw(kernel_header(name))
    if with_prep:
        a("s_cmp_ge_u32 s2, 256")
        a("s_cbranch_scc1 L_ka_prep")
    else:
        a("s_cmp_ge_u32 s2, 256")
        a("s_cbranch_scc1 L_ka_end")
    stamp(a, 0)
    a("s_load_dwordx2 s[4:5], s[0:1], 0")
    a("s_load_dwordx2 s[10:11], s[0:1], 88")
    a("s_getpc_b64 s[20:21]")
    a.label("L_ka_pc")
    a("s_add_u32 s20, s20, T_ka-L_ka_pc")
    a("s_addc_u32 s21, s21, 0")
    a("v_lshrrev_b32 v1, 6, v0")
    a("v_and_b32 v2, 63, v0")
    a("v_readfirstlane_b32 s6, v1")
    a("v_lshrrev_b32 v3, 4, v2")
    a("v_and_b32 v4, 15, v2")
    a("s_and_b32 s7, s2, 7")
    a("s_lshr_b32 s8, s2, 3")
    a("s_lshr_b32 s9, s8, 3")
    a("s_lshl_b32 s9, s9, 3")
    a("s_add_u32 s7, s7, s9")
    a("s_and_b32 s8, s8, 7")
    a("v_lshlrev_b32 v7, 4, v0")
    a("v_lshlrev_b32 v8, 10, v1")
    a("v_add_u32 v7, v7, v8")
    a("global_load_dwordx4 v[128:131], v7, s[20:21]", tag="F")
    a("global_load_dwordx4 v[132:135], v7, s[20:21] offset:1024", tag="F")
    a("s_lshl_b32 s9, s6, 9")
    a("s_add_u32 s9, s9, s7")
    a("v_lshlrev_b32 v5, 5, v3")
    a("v_add_u32 v5, s9, v5")
    a("v_mul_u32_u24 v5, 1280, v5")
    a("v_min_u32 v9, 9, v4")
    a("v_lshlrev_b32 v9, 4, v9")
    a("s_mul_i32 s9, s8, 160")
    a("v_add3_u32 v6, v5, v9, s9")
    a("v_lshl_add_u32 v5, v4, 4, v5")
    a("s_mov_b32 s24, 0")
    a("s_mov_b32 s25, 163840")
    a("s_mov_b32 s26, 327680")
    a("s_mov_b32 s27, 491520")
    a("s_waitcnt lgkmcnt(0)")
    srd(a, 12, 4, 5, 0, SZ_ACT)
    srd(a, 16, 10, 11, WS_U, SZ_ACT)
    XD = 32; OWN = 112
    for it in range(4):
        for j in range(5):
            r = XD + (it*5 + j)*4
            a(f"buffer_load_dwordx4 v[{r}:{r+3}], v5, s[12:15], s{24+it} offen offset:{256*j}", tag=("x", it))
    for it in range(4):
        a(f"buffer_load_dwordx4 v[{OWN+4*it}:{OWN+4*it+3}], v6, s[12:15], s{24+it} offen", tag=("o", it))
    a("s_mul_i32 s9, s6, 2560")
    a("v_mul_u32_u24 v10, 160, v3")
    a("v_add3_u32 v10, v10, v9, s9")
    a("v_lshrrev_b32 v11, 2, v2")
    a("v_mul_u32_u24 v11, 160, v11")
    a("v_and_b32 v12, 3, v2")
    a("v_lshl_add_u32 v11, v12, 3, v11")
    a("v_lshlrev_b32 v12, 5, v4")
    a("s_lshl_b32 s9, s6, 9")
    a("s_add_u32 s9, s9, s7")
    a("v_add_u32 v12, s9, v12")
    a("v_mul_u32_u24 v12, 1280, v12")
    a("s_mul_i32 s9, s8, 160")
    a("v_lshlrev_b32 v13, 3, v3")
    a("v_add3_u32 v12, v12, v13, s9")
    a("s_mov_b32 s22, 0x3f803f80")
    a("s_mov_b32 s23, 0x3acccccd")
    a("s_mov_b32 s28, 0x3727c5ac")
    for it in range(4):
        a(f"v_mov_b32 v{16+it}, 0"); a(f"v_mov_b32 v{20+it}, 0")
    stamp(a, 1)
    for it in range(4):
        a.wait_vm({("x", it)})
        for k in range(20):
            r = XD + it*20 + k
            a(f"v_dot2c_f32_bf16 v{16+it}, s22, v{r}")
            a(f"v_dot2c_f32_bf16 v{20+it}, v{r}, v{r}")
    stamp(a, 2)
    for sh in (8, 4, 2, 1):
        for k in range(8):
            a(f"v_add_f32_dpp v{16+k}, v{16+k}, v{16+k} row_ror:{sh} row_mask:0xf bank_mask:0xf")
    for it in range(4):
        a(f"v_mul_f32 v{16+it}, s23, v{16+it}")
        a(f"v_mul_f32 v{20+it}, s23, v{20+it}")
    for it in range(4):
        a(f"v_fma_f32 v{20+it}, -v{16+it}, v{16+it}, v{20+it}")
    for it in range(4):
        a(f"v_max_f32 v{20+it}, 0, v{20+it}")
    for it in range(4): bf16r(a, 16+it, 16+it)
    for it in range(4): bf16r(a, 20+it, 20+it)
    for it in range(4): a(f"v_add_f32 v{20+it}, s28, v{20+it}")
    for it in range(4): bf16r(a, 20+it, 20+it)
    for it in range(4): a(f"v_sqrt_f32 v{20+it}, v{20+it}")
    for it in range(4): bf16r(a, 20+it, 20+it)
    for it in range(4): a(f"v_rcp_f32 v{20+it}, v{20+it}")
    for it in range(4):
        a.wait_vm({("o", it)})
        T = 32 + it*16
        o = OWN + 4*it
        for k in range(4):
            a(f"v_lshlrev_b32 v{T+2*k}, 16, v{o+k}")
            a(f"v_and_b32 v{T+2*k+1}, 0xffff0000, v{o+k}")
        for k in range(8): a(f"v_sub_f32 v{T+k}, v{T+k}, v{16+it}")
        for k in range(4): a(f"v_cvt_pk_bf16_f32 v{T+8+k}, v{T+2*k}, v{T+2*k+1}")
        for k in range(4):
            a(f"v_lshlrev_b32 v{T+2*k}, 16, v{T+8+k}")
            a(f"v_and_b32 v{T+2*k+1}, 0xffff0000, v{T+8+k}")
        for k in range(8): a(f"v_mul_f32 v{T+k}, v{T+k}, v{20+it}")
        for k in range(4): a(f"v_cvt_pk_bf16_f32 v{T+8+k}, v{T+2*k}, v{T+2*k+1}")
        for k in range(4):
            a(f"v_lshlrev_b32 v{T+2*k}, 16, v{T+8+k}")
            a(f"v_and_b32 v{T+2*k+1}, 0xffff0000, v{T+8+k}")
        for k in range(4): a(f"v_cvt_pk_f16_f32 v{T+8+k}, v{T+2*k}, v{T+2*k+1}")
        a(f"ds_write_b128 v10, v[{T+8}:{T+11}] offset:{it*640}")
    a("s_waitcnt lgkmcnt(0)")
    a("s_barrier")
    stamp(a, 3)
    AF = 32
    for mt in range(5):
        for ks in range(2):
            r = AF + (mt*2 + ks)*4
            a(f"ds_read_b64_tr_b16 v[{r}:{r+1}], v11 offset:{ks*5120 + mt*32}")
            a(f"ds_read_b64_tr_b16 v[{r+2}:{r+3}], v11 offset:{ks*5120 + 2560 + mt*32}")
    a.wait_vm({"F"})
    DD = 80
    for mt in range(5):
        a(f"s_waitcnt lgkmcnt({max(0, 16 - 4*mt)})" if 16 - 4*mt <= 15 else "s_waitcnt lgkmcnt(15)")
        r = AF + mt*8
        a(f"v_mfma_f32_16x16x32_f16 v[{DD+4*mt}:{DD+4*mt+3}], v[{r}:{r+3}], v[128:131], 0")
        a(f"v_mfma_f32_16x16x32_f16 v[{DD+4*mt}:{DD+4*mt+3}], v[{r+4}:{r+7}], v[132:135], v[{DD+4*mt}:{DD+4*mt+3}]")
    for mt in range(5):
        d = DD + 4*mt; p = 100 + 2*mt
        a(f"v_cvt_pk_f16_f32 v{p}, v{d}, v{d+1}")
        a(f"v_cvt_pk_f16_f32 v{p+1}, v{d+2}, v{d+3}")
        a(f"buffer_store_dwordx2 v[{p}:{p+1}], v12, s[16:19], 0 offen offset:{32*mt}")
    stamp(a, 4)
    stamp_flush(a, 5, 10, 11)
    if with_prep:
        a("s_branch L_ka_end")
        a.label("L_ka_prep")
        a("s_sub_u32 s3, s2, 256")
        G.prep_body(a, 3, "L_ka_end")
    a.label("L_ka_end")
    a("s_endpgm")
    txt = a.text() + emit_table("T_ka", ka_table())
    grid = 256 + 405 if with_prep else 256
    return txt, kernel_desc(name, 136, 0, 96), f"; @launch kernel={name} grid=({grid},1,1) block=(256,1,1) lds=19456"

def kb_table():
    fr = []
    def frag16(fn):
        d = []
        for l in range(64): d += pack_f16(fn(l))
        return d
    for kind in ("c", "s", "n"):
        for ks in range(2):
            def fn(l):
                e1, h = l % 32, l // 32
                out = []
                for j in range(8):
                    d1 = 16*ks + 8*h + j
                    ang = 2*np.pi*((e1*d1) % 32)/32
                    out.append({"c": np.cos(ang), "s": np.sin(ang), "n": -np.sin(ang)}[kind])
                return out
            fr.append(frag16(fn))
    for kind in ("c", "s"):
        for q in range(3):
            d = []
            for l in range(64):
                e1, h = l % 32, l // 32
                for rr in range(4):
                    d2 = 8*q + 4*h + rr
                    ang = 2*np.pi*(e1*d2)/640
                    v = (np.cos(ang) if kind == "c" else np.sin(ang)) if d2 < 20 else 0.0
                    d.append(f32bits(v))
            fr.append(d)
    for ks in range(3):
        def fn(l):
            e2, h = l % 32, l // 32
            out = []
            for j in range(8):
                if ks < 2:
                    d2 = 8*(j//4) + 4*h + j % 4; kind = "c" if ks == 0 else "s"
                else:
                    d2 = 16 + 4*h + j % 4; kind = "c" if j < 4 else "s"
                if e2 >= 20 or d2 >= 20: out.append(0.0); continue
                ang = 2*np.pi*((e2*d2) % 20)/20
                out.append(64.0*(np.cos(ang) if kind == "c" else np.sin(ang)))
            return out
        fr.append(frag16(fn))
    d = []
    for f in fr: d += f
    return d

def gen_kb(name="kb_kernel"):
    a = Asm()
    a.raw(kernel_header(name))
    YS = 1312
    a("s_cmp_gt_u32 s2, 256")
    a("s_cbranch_scc1 L_kb_end")
    stamp(a, 0)
    a("s_load_dwordx2 s[4:5], s[0:1], 0")
    a("s_load_dwordx2 s[10:11], s[0:1], 88")
    a("s_getpc_b64 s[20:21]")
    a.label("L_kb_pc")
    a("s_add_u32 s20, s20, T_kb-L_kb_pc")
    a("s_addc_u32 s21, s21, 0")
    a("v_lshrrev_b32 v1, 6, v0")
    a("v_and_b32 v2, 63, v0")
    a("v_readfirstlane_b32 s6, v1")
    a("v_lshrrev_b32 v3, 4, v2")
    a("v_and_b32 v4, 15, v2")
    a("s_and_b32 s7, s2, 7")
    a("s_lshr_b32 s8, s2, 3")
    a("s_lshr_b32 s9, s8, 3")
    a("s_lshl_b32 s9, s9, 3")
    a("s_add_u32 s7, s7, s9")
    a("s_and_b32 s8, s8, 7")
    a("s_cmp_eq_u32 s2, 256")
    a("s_cselect_b32 s7, 0, s7")
    a("s_cselect_b32 s8, 8, s8")
    a("s_lshl_b32 s9, s8, 8")
    a("s_add_u32 s9, s9, s7")
    a("s_and_b32 s22, s8, 3")
    a("s_lshl_b32 s22, s22, 8")
    a("s_bfe_u32 s23, s8, 0x10002")
    a("s_lshl_b32 s24, s23, 5")
    a("s_add_u32 s22, s22, s24")
    a("s_lshr_b32 s24, s8, 3")
    a("s_lshl_b32 s24, s24, 10")
    a("s_add_u32 s22, s22, s24")
    a("s_cmp_eq_u32 s7, 0")
    a("s_cselect_b32 s9, s22, s9")
    a("s_mov_b32 s25, 0x3c800000")
    a("s_mov_b32 s26, 0x3c800000")
    a("s_mov_b32 s27, 0xbe800000")
    a("s_cbranch_scc0 L_kb_gen")
    a("s_mov_b32 s27, 0")
    a("s_cmp_eq_u32 s23, 1")
    a("s_cselect_b32 s25, 0, s25")
    a("s_cselect_b32 s26, s26, 0")
    a.label("L_kb_gen")
    a("s_lshl_b32 s22, s7, 6")
    a("s_lshl_b32 s23, s6, 4")
    a("s_add_u32 s22, s22, s23")
    a("v_add_u32 v5, s22, v3")
    a("v_mul_u32_u24 v5, 1280, v5")
    a("v_lshl_add_u32 v5, v4, 4, v5")
    a("s_mov_b32 s28, 0")
    a("s_mov_b32 s29, 5120")
    a("s_mov_b32 s30, 10240")
    a("s_mov_b32 s31, 15360")
    a("s_waitcnt lgkmcnt(0)")
    srd(a, 12, 10, 11, WS_U, SZ_ACT)
    srd(a, 16, 4, 5, 0, SZ_ACT)
    srd(a, 32, 10, 11, WS_H, SZ_ACT)
    srd(a, 36, 10, 11, WS_LN2, SZ_ACT)
    UD = 64
    for n in range(20):
        r = UD + 4*n
        a(f"buffer_load_dwordx4 v[{r}:{r+3}], v5, s[12:15], s{28+n//5} offen offset:{256*(n%5)}", tag=("u", n//5))
    TB = 144
    a("v_lshlrev_b32 v6, 4, v2")
    for f in range(15):
        if f % 4 == 0 and f:
            a("s_add_u32 s20, s20, 4096"); a("s_addc_u32 s21, s21, 0")
        a(f"global_load_dwordx4 v[{TB+4*f}:{TB+4*f+3}], v6, s[20:21] offset:{1024*(f%4)}", tag="tb")
    BC, BS, BN, TWC, TWS, H2 = TB, TB+8, TB+16, TB+24, TB+36, TB+48
    a("s_lshl_b32 s23, s6, 6")
    a("s_add_u32 s40, s9, s23")
    a("s_sub_u32 s41, 2048, s40")
    a("s_and_b32 s41, s41, 2047")
    a("v_mov_b32 v7, s40")
    a("v_mov_b32 v8, s41")
    a("v_cmp_gt_u32 vcc, 32, v2")
    a("v_cndmask_b32 v7, v8, v7, vcc")
    a("v_and_b32 v8, 31, v2")
    a("v_mul_u32_u24 v9, 1280, v7")
    a("v_lshl_add_u32 v9, v8, 4, v9")
    a("v_cmp_gt_u32 s[42:43], 16, v8")
    a("v_add_u32 v10, 1024, v9")
    a("v_cndmask_b32 v10, v9, v10, s[42:43]")
    XR = 204
    a(f"buffer_load_dwordx4 v[{XR}:{XR+3}], v9, s[16:19], 0 offen", tag="x")
    a(f"buffer_load_dwordx4 v[{XR+4}:{XR+7}], v9, s[16:19], 0 offen offset:512", tag="x")
    a(f"buffer_load_dwordx4 v[{XR+8}:{XR+11}], v10, s[16:19], 0 offen", tag="x")
    a("v_lshrrev_b32 v11, 5, v7")
    a("v_mul_u32_u24 v11, 40960, v11")
    a("v_and_b32 v12, 31, v7")
    a("v_lshl_add_u32 v11, v12, 4, v11")
    a("v_lshl_add_u32 v11, v8, 9, v11")
    a("v_lshrrev_b32 v13, 1, v4")
    a("v_lshlrev_b32 v13, 6, v13")
    a("v_add_u32 v13, s9, v13")
    a("v_and_b32 v14, 1, v4")
    a("v_cvt_f32_u32 v14, v14")
    a("v_mul_f32 v14, 0.25, v14")
    a("v_add_f32 v15, s27, v14")
    a("v_cmp_gt_u32 vcc, 8, v4")
    a("v_mov_b32 v16, s25")
    a("v_mov_b32 v17, s26")
    a("v_cndmask_b32 v16, 0, v16, vcc")
    a("v_cndmask_b32 v17, 0, v17, vcc")
    a("v_lshlrev_b32 v18, 2, v3")
    a("s_mov_b32 s44, 0x3a000000")
    BM = 216
    for j in range(8):
        off = j if j < 4 else 16 + j - 4
        a(f"v_add_u32 v{20+j}, {off}, v18")
    for j in range(8): a(f"v_mul_u32_u24 v{20+j}, v{20+j}, v13")
    for j in range(8): a(f"v_and_b32 v{20+j}, 0x7ff, v{20+j}")
    for j in range(8): a(f"v_cvt_f32_u32 v{20+j}, v{20+j}")
    for j in range(8):
        a(f"v_fma_f32 v{28+j}, v{20+j}, s44, v14")
        a(f"v_fma_f32 v{36+j}, v{20+j}, s44, v15")
    for j in range(16): a(f"v_cos_f32 v{28+j}, v{28+j}")
    for j in range(8):
        a(f"v_mul_f32 v{28+j}, v{28+j}, v16")
        a(f"v_mul_f32 v{36+j}, v{36+j}, v17")
    for j in range(8): a(f"v_cvt_pk_f16_f32 v{BM+j}, v{28+2*j}, v{28+2*j+1}")
    a("s_mul_i32 s23, s6, 20480")
    a("v_mul_u32_u24 v19, 1280, v3")
    a("v_add_u32 v19, s23, v19")
    a("v_lshlrev_b32 v20, 1, v3")
    a("v_xor_b32 v20, v20, v4")
    a("v_xor_b32 v21, 8, v20")
    a("v_lshl_add_u32 v20, v20, 4, v19")
    a("v_lshl_add_u32 v21, v21, 4, v19")
    a("v_lshrrev_b32 v22, 2, v2")
    a("v_and_b32 v23, 7, v22")
    a("v_lshlrev_b32 v23, 1, v23")
    a("v_bfe_u32 v24, v2, 1, 1")
    a("s_lshl_b32 s23, s6, 2")
    a("v_add_u32 v24, s23, v24")
    a("v_add_u32 v25, 2, v24")
    a("v_xor_b32 v24, v24, v23")
    a("v_xor_b32 v25, v25, v23")
    a("v_mul_u32_u24 v22, 1280, v22")
    a("v_and_b32 v26, 1, v2")
    a("v_lshl_add_u32 v22, v26, 3, v22")
    a("v_lshl_add_u32 v24, v24, 4, v22")
    a("v_lshl_add_u32 v25, v25, 4, v22")
    stamp(a, 1)
    for n in range(20):
        if n % 5 == 0: a.wait_vm({("u", n//5)})
        r = UD + 4*n
        a(f"ds_write_b128 v{20 + (n//5) % 2}, v[{r}:{r+3}] offset:{(n//5)*5120 + (n%5)*256}")
    a("s_waitcnt lgkmcnt(0)")
    a("s_barrier")
    stamp(a, 2)
    AF = 64; DD = 28
    def dreg(tile): return 224 + 4*tile if tile < 8 else 28 + 4*(tile-8)
    tiles = [(ap, b) for ap in range(5) for b in range(2)]
    for ti, (ap, b) in enumerate(tiles):
        for ks in range(2):
            r = AF + (ti*2 + ks)*4
            for half in range(2):
                a(f"ds_read_b64_tr_b16 v[{r+2*half}:{r+2*half+1}], v{24+b} offset:{ks*40960 + half*20480 + ap*256}")
    for ti in range(10):
        rem = 40 - 4*(ti+1)
        a(f"s_waitcnt lgkmcnt({min(rem, 15)})")
        r = AF + ti*8; d = dreg(ti)
        a(f"v_mfma_f32_16x16x32_f16 v[{d}:{d+3}], v[{r}:{r+3}], v[{BM}:{BM+3}], 0")
        a(f"v_mfma_f32_16x16x32_f16 v[{d}:{d+3}], v[{r+4}:{r+7}], v[{BM+4}:{BM+7}], v[{d}:{d+3}]")
    YP = 64
    for ti in range(10):
        d = dreg(ti)
        a(f"v_cvt_pk_f16_f32 v{YP+2*ti}, v{d}, v{d+1}")
        a(f"v_cvt_pk_f16_f32 v{YP+2*ti+1}, v{d+2}, v{d+3}")
    a(f"v_mul_u32_u24 v20, {YS}, v4")
    a("s_lshl_b32 s23, s6, 6")
    a("v_lshl_add_u32 v20, v3, 3, v20")
    a("v_add_u32 v20, s23, v20")
    a("v_lshrrev_b32 v21, 5, v2")
    a("v_bfe_u32 v22, v2, 2, 2")
    a("v_lshl_add_u32 v21, v21, 3, v22")
    a("v_mul_u32_u24 v21, 40, v21")
    a("v_bfe_u32 v22, v2, 4, 1")
    a("v_lshl_add_u32 v21, v22, 5, v21")
    a("v_and_b32 v22, 3, v2")
    a("v_lshl_add_u32 v21, v22, 3, v21")
    a(f"s_mul_i32 s23, s6, {2*YS}")
    a("v_add_u32 v21, s23, v21")
    a("s_barrier")
    a("v_cmp_gt_u32 vcc, 8, v4")
    a("s_and_saveexec_b64 s[46:47], vcc")
    for ti, (ap, b) in enumerate(tiles):
        a(f"ds_write_b64 v20, v[{YP+2*ti}:{YP+2*ti+1}] offset:{256*ap + 32*b}")
    a("s_mov_b64 exec, s[46:47]")
    a("s_waitcnt lgkmcnt(0)")
    a("s_barrier")
    stamp(a, 3)
    for p in range(2):
        for ks in range(2):
            r = 64 + (p*2 + ks)*4
            a(f"ds_read_b64_tr_b16 v[{r}:{r+1}], v21 offset:{p*YS + ks*640}")
            a(f"ds_read_b64_tr_b16 v[{r+2}:{r+3}], v21 offset:{p*YS + ks*640 + 160}")
    a.wait_vm({"tb"}, extra="lgkmcnt(0)")
    GR, GI = 80, 96
    AR0, AR1, AI0, AI1 = 64, 68, 72, 76
    def mm(d, A, B, first):
        c = "0" if first else f"v[{d}:{d+15}]"
        a(f"v_mfma_f32_32x32x16_f16 v[{d}:{d+15}], v[{A}:{A+3}], v[{B}:{B+3}], {c}")
    mm(GR, AR0, BC, True);   mm(GI, AI0, BC, True)
    mm(GR, AR1, BC+4, False); mm(GI, AI1, BC+4, False)
    mm(GR, AI0, BS, False);  mm(GI, AR0, BN, False)
    mm(GR, AI1, BS+4, False); mm(GI, AR1, BN+4, False)
    T = 112
    for r in range(12): a(f"v_mul_f32 v{T+r}, v{GR+r}, v{TWC+r}")
    for r in range(12): a(f"v_mul_f32 v{T+12+r}, v{GI+r}, v{TWC+r}")
    for r in range(12): a(f"v_fmac_f32 v{T+r}, v{GI+r}, v{TWS+r}")
    for r in range(12): a(f"v_fma_f32 v{T+12+r}, -v{GR+r}, v{TWS+r}, v{T+12+r}")
    P = 64
    for j in range(4): a(f"v_cvt_pk_f16_f32 v{P+j}, v{T+2*j}, v{T+2*j+1}")
    for j in range(4): a(f"v_cvt_pk_f16_f32 v{P+4+j}, v{T+12+2*j}, v{T+12+2*j+1}")
    for j in range(2): a(f"v_cvt_pk_f16_f32 v{P+8+j}, v{T+8+2*j}, v{T+8+2*j+1}")
    for j in range(2): a(f"v_cvt_pk_f16_f32 v{P+10+j}, v{T+20+2*j}, v{T+20+2*j+1}")
    YO = 80
    mm(YO, P, H2, True); mm(YO, P+4, H2+4, False); mm(YO, P+8, H2+8, False)
    a("s_mul_i32 s23, s6, 5632")
    a("s_add_u32 s23, s23, 16384")
    a("v_and_b32 v20, 31, v2")
    a("v_lshrrev_b32 v22, 5, v2")
    a("v_lshlrev_b32 v23, 7, v20")
    a("v_lshl_add_u32 v23, v22, 4, v23")
    a("v_add_u32 v24, s23, v23")
    a(f"s_add_u32 s24, s23, {2688 + (640-27)*4}")
    a("v_sub_u32 v25, s24, v23")
    a("v_cmp_gt_u32 vcc, 20, v20")
    a("s_and_saveexec_b64 s[46:47], vcc")
    for jj in range(4):
        a(f"ds_write_b128 v24, v[{YO+4*jj}:{YO+4*jj+3}] offset:{32*jj}")
    for jj in range(4):
        for rr in range(4):
            a(f"ds_write_b32 v25, v{YO+4*jj+rr} offset:{(27 - 8*jj - rr)*4}")
    a("v_cmp_eq_u32 vcc, 0, v2")
    a("s_and_b64 exec, exec, vcc")
    a(f"ds_write_b32 v24, v{YO} offset:2688")
    a("s_mov_b64 exec, s[46:47]")
    a("v_mul_u32_u24 v26, 2688, v22")
    a("v_lshl_add_u32 v26, v8, 5, v26")
    a("v_add_u32 v26, s23, v26")
    a("v_add_u32 v27, 2048, v26")
    a("v_cndmask_b32 v27, v26, v27, s[42:43]")
    a("s_waitcnt lgkmcnt(0)")
    YV = 96
    a(f"ds_read_b128 v[{YV}:{YV+3}], v26")
    a(f"ds_read_b128 v[{YV+4}:{YV+7}], v26 offset:16")
    a(f"ds_read_b128 v[{YV+8}:{YV+11}], v26 offset:1024")
    a(f"ds_read_b128 v[{YV+12}:{YV+15}], v26 offset:1040")
    a(f"ds_read_b128 v[{YV+16}:{YV+19}], v27")
    a(f"ds_read_b128 v[{YV+20}:{YV+23}], v27 offset:16")
    stamp(a, 4)
    a.wait_vm({"x"}, extra="lgkmcnt(0)")
    HP = 120
    XU = 144
    for k in range(12): a(f"v_cvt_pk_bf16_f32 v{HP+k}, v{YV+2*k}, v{YV+2*k+1}")
    for k in range(12):
        a(f"v_lshlrev_b32 v{YV+2*k}, 16, v{HP+k}")
        a(f"v_and_b32 v{YV+2*k+1}, 0xffff0000, v{HP+k}")
        a(f"v_lshlrev_b32 v{XU+2*k}, 16, v{XR+k}")
        a(f"v_and_b32 v{XU+2*k+1}, 0xffff0000, v{XR+k}")
    for k in range(24): a(f"v_add_f32 v{YV+k}, v{YV+k}, v{XU+k}")
    for k in range(12): a(f"v_cvt_pk_bf16_f32 v{HP+k}, v{YV+2*k}, v{YV+2*k+1}")
    for k in range(12):
        a(f"v_lshlrev_b32 v{YV+2*k}, 16, v{HP+k}")
        a(f"v_and_b32 v{YV+2*k+1}, 0xffff0000, v{HP+k}")
    a("s_mov_b64 s[48:49], -1")
    a("s_and_b32 s24, s40, 1023")
    a("s_cmp_eq_u32 s24, 0")
    a("s_cselect_b32 s49, 0, s49")
    a("s_cmp_gt_u32 s40, 1024")
    a("s_cselect_b32 s52, 1, 0")
    a("s_cmp_eq_u32 s8, 8")
    a("s_cselect_b32 s53, 1, 0")
    a("s_and_b32 s52, s52, s53")
    a("s_cmp_eq_u32 s52, 1")
    a("s_cselect_b64 s[48:49], 0, s[48:49]")
    a("s_and_b64 s[50:51], s[48:49], s[42:43]")
    a(f"v_add_f32 v20, v{YV}, v{YV+1}")
    a(f"v_add_f32 v21, v{YV+16}, v{YV+17}")
    for k in range(2, 16): a(f"v_add_f32 v20, v20, v{YV+k}")
    for k in range(18, 24): a(f"v_add_f32 v21, v21, v{YV+k}")
    a("v_cndmask_b32 v21, 0, v21, s[42:43]")
    a("v_add_f32 v20, v20, v21")
    def allreduce32(v):
        for sh in (8, 4, 2, 1):
            a(f"v_add_f32_dpp v{v}, v{v}, v{v} row_ror:{sh} row_mask:0xf bank_mask:0xf")
        a(f"ds_swizzle_b32 v23, v{v} offset:0x401F")
        a("s_waitcnt lgkmcnt(0)")
        a(f"v_add_f32 v{v}, v{v}, v23")
    allreduce32(20)
    a("s_mov_b32 s24, 0x3acccccd")
    a("v_mul_f32 v20, s24, v20")
    for k in range(24): a(f"v_sub_f32 v{XU+k}, v{YV+k}, v20")
    a(f"v_mul_f32 v21, v{XU}, v{XU}")
    a(f"v_mul_f32 v22, v{XU+16}, v{XU+16}")
    for k in range(1, 16): a(f"v_fmac_f32 v21, v{XU+k}, v{XU+k}")
    for k in range(17, 24): a(f"v_fmac_f32 v22, v{XU+k}, v{XU+k}")
    a("v_cndmask_b32 v22, 0, v22, s[42:43]")
    a("v_add_f32 v21, v21, v22")
    allreduce32(21)
    a("v_mul_f32 v21, s24, v21")
    bf16r(a, 20, 20); bf16r(a, 21, 21)
    a("v_add_f32 v21, 0x3727c5ac, v21")
    bf16r(a, 21, 21)
    a("v_sqrt_f32 v21, v21")
    bf16r(a, 21, 21)
    a("v_rcp_f32 v21, v21")
    LP = 132
    for k in range(24): a(f"v_sub_f32 v{XU+k}, v{YV+k}, v20")
    for k in range(12): a(f"v_cvt_pk_bf16_f32 v{LP+k}, v{XU+2*k}, v{XU+2*k+1}")
    for k in range(12):
        a(f"v_lshlrev_b32 v{XU+2*k}, 16, v{LP+k}")
        a(f"v_and_b32 v{XU+2*k+1}, 0xffff0000, v{LP+k}")
    for k in range(24): a(f"v_mul_f32 v{XU+k}, v{XU+k}, v21")
    for k in range(12): a(f"v_cvt_pk_bf16_f32 v{LP+k}, v{XU+2*k}, v{XU+2*k+1}")
    a("s_mov_b32 s24, 16384")
    a("s_mov_b32 s25, 32768")
    a("s_mov_b64 exec, s[48:49]")
    a("s_cbranch_execz L_kb_done")
    a(f"buffer_store_dwordx4 v[{HP}:{HP+3}], v9, s[32:35], 0 offen")
    a(f"buffer_store_dwordx4 v[{HP+4}:{HP+7}], v9, s[32:35], 0 offen offset:512")
    a(f"buffer_store_dwordx4 v[{LP}:{LP+3}], v11, s[36:39], 0 offen")
    a(f"buffer_store_dwordx4 v[{LP+4}:{LP+7}], v11, s[36:39], s24 offen")
    a("s_mov_b64 exec, s[50:51]")
    a(f"buffer_store_dwordx4 v[{HP+8}:{HP+11}], v9, s[32:35], 0 offen offset:1024")
    a(f"buffer_store_dwordx4 v[{LP+8}:{LP+11}], v11, s[36:39], s25 offen")
    a.label("L_kb_done")
    a("s_mov_b64 exec, -1")
    stamp(a, 5)
    stamp_flush(a, 6, 10, 11)
    a.label("L_kb_end")
    a("s_endpgm")
    txt = a.text() + emit_table("T_kb", kb_table())
    return txt, kernel_desc(name, 256, 0, 96), f"; @launch kernel={name} grid=(257,1,1) block=(256,1,1) lds=81920"

if __name__ == "__main__":
    import sys
    if len(sys.argv) > 2: G.PROF = True
    open(sys.argv[1], "w").write(G.assemble([gen_ka(), gen_kb(), G.gen_kc(), G.gen_kd()]))
```

```python
from dsl import *

WS_U = 0x0
WS_H = 0x280000
WS_LN2 = 0x500000
WS_WGU = 0x780000
WS_WD = 0xBC0000
WS_HH = 0xE00000
SZ_ACT = 2048 * 640 * 2
SZ_WGU = 108 * 40 * 1024
SZ_WD = 40 * 54 * 1024
SZ_HH = 128 * 54 * 1024

def srd(a, d, base_lo, base_hi, off, size):
    if off:
        a(f"s_add_u32 s{d}, s{base_lo}, {off}")
        a(f"s_addc_u32 s{d+1}, s{base_hi}, 0")
    else:
        a(f"s_mov_b32 s{d}, s{base_lo}")
        a(f"s_mov_b32 s{d+1}, s{base_hi}")
    a(f"s_mov_b32 s{d+2}, {size}")
    a(f"s_mov_b32 s{d+3}, 0x00020000")

WS_DBG = 0x2000000
PROF = False
PREP_WD_ONLY = False
def stamp(a, i):
    if PROF:
        a(f"s_memtime s[{60+2*i}:{61+2*i}]")
        if i == 0: a("s_memrealtime s[90:91]")
def stamp_flush(a, n, ws_lo, ws_hi):
    if not PROF: return
    a("s_memrealtime s[80:81]")
    a("s_waitcnt lgkmcnt(0)")
    srd(a, 84, ws_lo, ws_hi, WS_DBG, 1 << 20)
    a("v_lshrrev_b32 v1, 6, v0")
    a("s_lshl_b32 s82, s2, 2")
    a("v_add_u32 v1, s82, v1")
    a("v_lshlrev_b32 v1, 6, v1")
    for i in range(n):
        a(f"v_mov_b32 v2, s{60+2*i}")
        a(f"buffer_store_dword v2, v1, s[84:87], 0 offen offset:{4*i}")
    a("v_mov_b32 v2, s80")
    a("buffer_store_dword v2, v1, s[84:87], 0 offen offset:60")
    a("v_mov_b32 v2, s90")
    a("buffer_store_dword v2, v1, s[84:87], 0 offen offset:56")

def prep_body(a, wg_sreg, end_label, lds_base=0, tag=''):
    a("s_load_dwordx4 s[4:7], s[0:1], 48")
    a("s_load_dwordx2 s[8:9], s[0:1], 64")
    a("s_load_dwordx2 s[10:11], s[0:1], 88")
    a("v_lshrrev_b32 v1, 6, v0")
    a("v_and_b32 v2, 63, v0")
    a("v_readfirstlane_b32 s12, v1")
    a(f"s_lshl_b32 s13, s{wg_sreg}, 2")
    a("s_add_u32 s13, s13, s12")
    if PREP_WD_ONLY: a("s_add_u32 s13, s13, 1080")
    if PREP_WD_ONLY:
        a(f"s_cmp_ge_u32 s13, 1620")
        a(f"s_cbranch_scc1 L_prep_touch{tag}")
    else:
        a(f"s_cmp_ge_u32 s13, 1620")
        a(f"s_cbranch_scc1 {end_label}")
    a("s_mul_i32 s14, s12, 4864")
    if lds_base: a(f"s_add_u32 s14, s14, {lds_base}")
    a("v_lshrrev_b32 v3, 3, v2")
    a("v_and_b32 v4, 7, v2")
    a("v_lshlrev_b32 v4, 4, v4")
    a("v_mul_u32_u24 v5, 144, v3")
    a("v_add_u32 v5, v5, v4")
    a("v_add_u32 v5, s14, v5")
    a("v_lshrrev_b32 v6, 4, v2")
    a("v_bfe_u32 v7, v2, 2, 2")
    a("v_and_b32 v8, 3, v2")
    a("v_lshlrev_b32 v8, 3, v8")
    a("v_lshlrev_b32 v9, 4, v2")
    a("s_waitcnt lgkmcnt(0)")
    a("s_cmp_ge_u32 s13, 1080")
    a(f"s_cbranch_scc1 L_prep_wd{tag}")
    srd(a, 16, 4, 5, 0, 640 * 1728 * 2)
    srd(a, 20, 6, 7, 0, 640 * 1728 * 2)
    srd(a, 24, 10, 11, WS_WGU, SZ_WGU)
    a("s_mul_i32 s28, s13, 52429")
    a("s_lshr_b32 s28, s28, 21")
    a("s_mul_i32 s29, s28, 40")
    a("s_sub_u32 s29, s13, s29")
    a("s_mul_i32 s30, s29, 55296")
    a("s_lshl_b32 s31, s28, 7")
    a("s_add_u32 s30, s30, s31")
    a("s_add_u32 s31, s30, 27648")
    a("v_mul_u32_u24 v10, 3456, v3")
    a("v_add_u32 v10, v10, v4")
    a("buffer_load_dwordx4 v[12:15], v10, s[16:19], s30 offen")
    a("buffer_load_dwordx4 v[16:19], v10, s[16:19], s31 offen")
    a("buffer_load_dwordx4 v[20:23], v10, s[20:23], s30 offen")
    a("buffer_load_dwordx4 v[24:27], v10, s[20:23], s31 offen")
    a("v_and_b32 v11, 1, v6")
    a("v_lshlrev_b32 v11, 4, v11")
    a("v_lshrrev_b32 v28, 1, v6")
    a("v_lshlrev_b32 v28, 3, v28")
    a("v_add3_u32 v11, v11, v28, v7")
    a("v_mul_u32_u24 v11, 144, v11")
    a("v_add3_u32 v11, v11, v8, s14")
    a("s_mul_i32 s32, s28, 160")
    a("s_add_u32 s32, s32, s29")
    a("s_lshl_b32 s32, s32, 10")
    a("s_waitcnt vmcnt(0)")
    a("ds_write_b128 v5, v[12:15]")
    a("ds_write_b128 v5, v[16:19] offset:1152")
    a("ds_write_b128 v5, v[20:23] offset:2304")
    a("ds_write_b128 v5, v[24:27] offset:3456")
    a("s_waitcnt lgkmcnt(0)")
    for u in range(4):
        a(f"ds_read_b64_tr_b16 v[{12+4*u}:{13+4*u}], v11 offset:{32*u}")
        a(f"ds_read_b64_tr_b16 v[{14+4*u}:{15+4*u}], v11 offset:{32*u+576}")
    for u in range(4):
        a(f"s_waitcnt lgkmcnt({6-2*u})")
        a(f"buffer_store_dwordx4 v[{12+4*u}:{15+4*u}], v9, s[24:27], s32 offen")
        if u < 3: a("s_add_u32 s32, s32, 40960")
    a(f"s_branch {end_label}")
    a.label(f"L_prep_wd{tag}")
    srd(a, 16, 8, 9, 0, 1728 * 640 * 2)
    srd(a, 24, 10, 11, WS_WD, SZ_WD)
    a("s_sub_u32 s13, s13, 1080")
    a("s_mul_i32 s28, s13, 38837")
    a("s_lshr_b32 s28, s28, 21")
    a("s_mul_i32 s29, s28, 54")
    a("s_sub_u32 s29, s13, s29")
    a("s_mul_i32 s30, s29, 40960")
    a("s_lshl_b32 s31, s28, 7")
    a("s_add_u32 s30, s30, s31")
    a("s_add_u32 s31, s30, 10240")
    a("s_add_u32 s33, s30, 20480")
    a("s_add_u32 s34, s30, 30720")
    a("v_mul_u32_u24 v10, 1280, v3")
    a("v_add_u32 v10, v10, v4")
    a("buffer_load_dwordx4 v[12:15], v10, s[16:19], s30 offen")
    a("buffer_load_dwordx4 v[16:19], v10, s[16:19], s31 offen")
    a("buffer_load_dwordx4 v[20:23], v10, s[16:19], s33 offen")
    a("buffer_load_dwordx4 v[24:27], v10, s[16:19], s34 offen")
    a("v_lshrrev_b32 v11, 1, v6")
    a("v_lshlrev_b32 v11, 4, v11")
    a("v_and_b32 v28, 1, v6")
    a("v_lshlrev_b32 v28, 2, v28")
    a("v_add3_u32 v11, v11, v28, v7")
    a("v_mul_u32_u24 v11, 144, v11")
    a("v_add3_u32 v11, v11, v8, s14")
    a("s_mul_i32 s32, s28, 216")
    a("s_add_u32 s32, s32, s29")
    a("s_lshl_b32 s32, s32, 10")
    a("s_waitcnt vmcnt(0)")
    a("ds_write_b128 v5, v[12:15]")
    a("ds_write_b128 v5, v[16:19] offset:1152")
    a("ds_write_b128 v5, v[20:23] offset:2304")
    a("ds_write_b128 v5, v[24:27] offset:3456")
    a("s_waitcnt lgkmcnt(0)")
    for u in range(4):
        a(f"ds_read_b64_tr_b16 v[{12+4*u}:{13+4*u}], v11 offset:{32*u}")
        a(f"ds_read_b64_tr_b16 v[{14+4*u}:{15+4*u}], v11 offset:{32*u+1152}")
    for u in range(4):
        a(f"s_waitcnt lgkmcnt({6-2*u})")
        a(f"buffer_store_dwordx4 v[{12+4*u}:{15+4*u}], v9, s[24:27], s32 offen")
        if u < 3: a("s_add_u32 s32, s32, 55296")
    if PREP_WD_ONLY:
        a(f"s_branch {end_label}")
        a.label(f"L_prep_touch{tag}")
        a(f"s_cmp_ge_u32 s13, 2160")
        a(f"s_cbranch_scc1 {end_label}")
        a("s_sub_u32 s13, s13, 1620")
        a("s_lshl_b32 s14, s13, 12")
        a("v_lshlrev_b32 v9, 4, v2")
        a("s_waitcnt lgkmcnt(0)")
        srd(a, 16, 4, 5, 0, 640 * 1728 * 2)
        srd(a, 20, 6, 7, 0, 640 * 1728 * 2)
        for i in range(4):
            a(f"buffer_load_dwordx4 v[{12+4*i}:{15+4*i}], v9, s[16:19], s14 offen offset:{1024*i}")
        for i in range(4):
            a(f"buffer_load_dwordx4 v[{12+4*i}:{15+4*i}], v9, s[20:23], s14 offen offset:{1024*i}")
        a("s_waitcnt vmcnt(0)")

def gen_prep(name="kp_kernel"):
    a = Asm()
    a.raw(kernel_header(name))
    prep_body(a, 2, "L_kp_end")
    a.label("L_kp_end")
    a("s_endpgm")
    return a.text(), kernel_desc(name, 32, 0, 48), f"; @launch kernel={name} grid=(405,1,1) block=(256,1,1) lds=19456"

def gen_kc(name="kc_kernel"):
    a = Asm()
    a.raw(kernel_header(name))
    NST = 10; NU = 7; SLOT = 28672; NSLOT = 5; KM = 7
    a("s_cmp_ge_u32 s2, 256")
    a("s_cbranch_scc1 L_kc_end")
    stamp(a, 0)
    a("s_load_dwordx2 s[4:5], s[0:1], 88")
    a("v_lshrrev_b32 v1, 6, v0")
    a("v_and_b32 v2, 63, v0")
    a("v_readfirstlane_b32 s6, v1")
    a("v_lshlrev_b32 v3, 4, v2")
    a("s_and_b32 s7, s2, 7")
    a("s_lshr_b32 s8, s2, 3")
    a("s_and_b32 s9, s7, 1")
    a("s_lshl_b32 s9, s9, 3")
    a("s_and_b32 s10, s8, 7")
    a("s_add_u32 s9, s9, s10")
    a("s_lshr_b32 s10, s7, 1")
    a("s_lshl_b32 s10, s10, 2")
    a("s_lshr_b32 s11, s8, 3")
    a("s_add_u32 s10, s10, s11")
    a("s_mul_i32 s10, s10, 27")
    a("s_lshr_b32 s10, s10, 2")
    a("s_lshl_b32 s9, s9, 2")
    a("s_add_u32 s9, s9, s6")
    a("s_mul_i32 s11, s10, 40960")
    a("s_lshl_b32 s31, s6, 10")
    a("s_add_u32 s11, s11, s31")
    a("v_add_u32 v4, s11, v3")
    for u in range(NU):
        a(f"s_mov_b32 s{24+u}, {u*40960}")
    a("s_mul_i32 s32, s9, 40960")
    a("s_waitcnt lgkmcnt(0)")
    srd(a, 12, 4, 5, WS_WGU, SZ_WGU)
    srd(a, 16, 4, 5, WS_LN2, SZ_ACT)
    ACC = 8
    WB = 120
    EP = 184
    LB = 5
    def dma_one(st, u):
        slot = st % NSLOT
        a(f"s_add_u32 m0, s31, {slot*SLOT + u*4096}")
        a(f"buffer_load_dwordx4 v4, s[12:15], s{24+u} offen lds", tag=("dma", st))
        a(f"s_add_u32 s{24+u}, s{24+u}, 4096")
    def act(k):
        if k % 4 == 0 and k > 0:
            a("s_add_u32 s32, s32, 4096")
        a(f"buffer_load_dwordx4 a[{4*k}:{4*k+3}], v3, s[16:19], s32 offen offset:{(k%4)*1024}", tag=("act", k // 4))
    for u in range(NU): dma_one(0, u)
    for k in range(0, 4): act(k)
    jobs = []
    for s_ in range(1, NST):
        jobs += [("d", s_, u, max(0, s_ - (NSLOT - 1))) for u in range(NU)]
        jobs += [("a", s_, i, 0) for i in range(4)]
    bar_passed = [0]
    def issue_job():
        if not jobs: return
        kind, s_, i, mb = jobs[0]
        if mb > bar_passed[0]: return
        jobs.pop(0)
        if kind == "a": act(4 * s_ + i)
        else: dma_one(s_, i)
    for _ in range(NU): issue_job()
    srd(a, 20, 4, 5, WS_HH, SZ_HH)
    a("v_bfe_u32 v6, v2, 4, 1")
    a("v_mul_u32_u24 v6, 55296, v6")
    a("v_lshrrev_b32 v7, 5, v2")
    a("v_lshlrev_b32 v7, 8, v7")
    a("v_add_u32 v6, v6, v7")
    a("v_and_b32 v7, 15, v2")
    a("v_lshl_add_u32 v6, v7, 4, v6")
    a("s_mul_i32 s33, s9, 110592")
    a("s_lshl_b32 s34, s10, 9")
    a("s_add_u32 s33, s33, s34")
    a("s_mov_b32 s34, 0xbfb8aa3b")
    a("s_mov_b32 s35, 0xbfb8aa3b")
    a("s_mov_b32 s36, 1.0")
    a("s_mov_b32 s37, 1.0")
    def wread(st, kk, u):
        buf = (st * 4 + kk) % 2
        r = WB + buf * 28 + u * 4
        a(f"ds_read_b128 v[{r}:{r+3}], v{LB} offset:{(u*4+kk)*1024}")
    def mfma(st, kk, u):
        buf = (st * 4 + kk) % 2
        r = WB + buf * 28 + u * 4
        k = st * 4 + kk
        c = "0" if k == 0 else f"v[{ACC+16*u}:{ACC+16*u+15}]"
        a(f"v_mfma_f32_32x32x16_bf16 v[{ACC+16*u}:{ACC+16*u+15}], v[{r}:{r+3}], a[{4*k}:{4*k+3}], {c}")
    stamp(a, 1)
    a.wait_vm({("dma", 0), ("act", 0)})
    a("s_barrier")
    stamp(a, 2)
    a(f"v_mov_b32 v{LB}, v3")
    for u in range(NU): wread(0, 0, u)
    NUM = NST - KM
    NF = 4 * NUM
    RING = 16; DIST = 8
    seq = [(u, f) for u in range(NU) for f in range(NF)]
    def uread(i):
        u, f = seq[i]
        st = KM + f // 4; kk = f % 4
        off = (st % NSLOT) * SLOT + (u * 4 + kk) * 1024
        base = 3
        if off >= 57344: base = 7; off -= 57344
        if off >= 57344: base = 209; off -= 57344
        r = WB + 4 * (i % RING)
        a(f"ds_read_b128 v[{r}:{r+3}], v{base} offset:{off}")
    a("v_add_u32 v7, 57344, v3")
    a("v_add_u32 v209, 114688, v3")
    for st in range(KM):
        for kk in range(4):
            nst, nkk = (st, kk + 1) if kk < 3 else (st + 1, 0)
            if kk == 3 and st in (2, 5): stamp(a, 3 + st // 3)
            last_trans = (st == KM - 1 and kk == 3)
            if kk == 3:
                need_ = {("dma", nst), ("act", nst)}
                if last_trans:
                    assert not jobs
                    need_ = {("dma", q) for q in range(KM, NST)} | {("act", q) for q in range(KM, NST)}
                a.wait_vm(need_, extra="lgkmcnt(0)")
                a("s_barrier")
                bar_passed[0] = nst
                a(f"v_add_u32 v{LB}, {(nst % NSLOT) * SLOT}, v3")
            for u in range(NU):
                if kk != 3:
                    a(f"s_waitcnt lgkmcnt({NU-1})")
                mfma(st, kk, u)
                if not last_trans:
                    wread(nst, nkk, u)
                else:
                    uread(u)
                issue_job()
    stamp(a, 5)
    def epi_instrs(u):
        g = ACC + 16 * u; up = g + 8
        t = EP + (u % 2) * 12
        L = []
        for r in range(4): L.append(f"v_pk_mul_f32 v[{t+2*r}:{t+2*r+1}], v[{g+2*r}:{g+2*r+1}], s[34:35]")
        for r in range(8): L.append(f"v_exp_f32 v{t+r}, v{t+r}")
        for r in range(4): L.append(f"v_pk_add_f32 v[{t+2*r}:{t+2*r+1}], v[{t+2*r}:{t+2*r+1}], s[36:37]")
        for r in range(8): L.append(f"v_rcp_f32 v{t+r}, v{t+r}")
        for r in range(4): L.append(f"v_pk_mul_f32 v[{t+2*r}:{t+2*r+1}], v[{t+2*r}:{t+2*r+1}], v[{up+2*r}:{up+2*r+1}]")
        for r in range(4): L.append(f"v_cvt_pk_bf16_f32 v{t+8+r}, v{t+2*r}, v{t+2*r+1}")
        L.append(f"buffer_store_dwordx4 v[{t+8}:{t+11}], v6, s[20:23], s33 offen offset:{u*512}")
        return L
    for i in range(NU, DIST): uread(i)
    pend = []
    for i, (u, f) in enumerate(seq):
        k = KM * 4 + f
        ahead = min(len(seq) - 1, i + DIST - 1) - i
        a(f"s_waitcnt lgkmcnt({ahead})")
        r = WB + 4 * (i % RING)
        a(f"v_mfma_f32_32x32x16_bf16 v[{ACC+16*u}:{ACC+16*u+15}], v[{r}:{r+3}], a[{4*k}:{4*k+3}], v[{ACC+16*u}:{ACC+16*u+15}]")
        if i + DIST < len(seq): uread(i + DIST)
        if f >= 1:
            for _ in range(3):
                if pend: a(pend.pop(0))
        if f == NF - 1:
            while pend: a(pend.pop(0))
            pend = epi_instrs(u)
    stamp(a, 6)
    while pend: a(pend.pop(0))
    stamp(a, 7)
    stamp_flush(a, 8, 4, 5)
    a.label("L_kc_end")
    a("s_endpgm")
    return a.text(), kernel_desc(name, 212, 160, 96), f"; @launch kernel={name} grid=(256,1,1) block=(256,1,1) lds={SLOT*NSLOT}"

def gen_kc2(name="kc_kernel"):
    a = Asm()
    a.raw(kernel_header(name))
    NST = 10; NU = 7; MOFF = 14336 + 128; SLOT = 28800; NSLOT = 5; KM = 8
    a("s_cmp_ge_u32 s2, 256")
    a("s_cbranch_scc1 L_kc_end")
    stamp(a, 0)
    a("s_load_dwordx2 s[4:5], s[0:1], 88")
    a("s_load_dwordx4 s[40:43], s[0:1], 48")
    a("v_lshrrev_b32 v1, 6, v0")
    a("v_and_b32 v2, 63, v0")
    a("v_readfirstlane_b32 s6, v1")
    a("v_lshlrev_b32 v3, 4, v2")
    a("s_and_b32 s7, s2, 7")
    a("s_lshr_b32 s8, s2, 3")
    a("s_and_b32 s9, s7, 1")
    a("s_lshl_b32 s9, s9, 3")
    a("s_and_b32 s10, s8, 7")
    a("s_add_u32 s9, s9, s10")
    a("s_lshr_b32 s10, s7, 1")
    a("s_lshl_b32 s10, s10, 2")
    a("s_lshr_b32 s11, s8, 3")
    a("s_add_u32 s10, s10, s11")
    a("s_mul_i32 s10, s10, 27")
    a("s_lshr_b32 s10, s10, 2")
    a("s_lshl_b32 s9, s9, 2")
    a("s_add_u32 s9, s9, s6")
    a("v_mul_u32_u24 v4, 0x4925, v2")
    a("v_lshrrev_b32 v4, 18, v4")
    a("v_mul_u32_u24 v7, 14, v4")
    a("v_sub_u32 v7, v2, v7")
    a("v_mul_u32_u24 v4, 3456, v4")
    a("v_lshl_add_u32 v4, v7, 4, v4")
    a("s_mul_i32 s24, s6, 13824")
    a("s_lshl_b32 s25, s10, 5")
    a("s_add_u32 s24, s24, s25")
    a("s_mul_i32 s31, s6, 896")
    a("s_mov_b32 s26, -1")
    a("s_mov_b32 s27, 0x00ffffff")
    a("v_bfe_u32 v7, v2, 4, 1")
    a(f"v_mul_u32_u24 v8, {MOFF}, v7")
    a("v_lshrrev_b32 v7, 5, v2")
    a("v_mul_u32_u24 v7, 1792, v7")
    a("v_add_u32 v8, v8, v7")
    a("v_bfe_u32 v7, v2, 2, 2")
    a("v_mul_u32_u24 v7, 224, v7")
    a("v_add_u32 v8, v8, v7")
    a("v_and_b32 v7, 3, v2")
    a("v_lshl_add_u32 v208, v7, 3, v8")
    a("s_mul_i32 s32, s9, 40960")
    a("s_waitcnt lgkmcnt(0)")
    srd(a, 12, 40, 41, 0, 640 * 1728 * 2)
    srd(a, 44, 42, 43, 0, 640 * 1728 * 2)
    srd(a, 16, 4, 5, WS_LN2, SZ_ACT)
    ACC = 8
    WB = 120
    EP = 184
    LB = 5
    def dma_one(st, u):
        slot = st % NSLOT
        a("s_mov_b64 exec, s[26:27]")
        a(f"s_add_u32 m0, s31, {slot*SLOT + u*3584}")
        a(f"buffer_load_dwordx4 v4, s[12:15], s24 offen lds", tag=("dma", st))
        a(f"s_add_u32 m0, s31, {slot*SLOT + MOFF + u*3584}")
        a(f"buffer_load_dwordx4 v4, s[44:47], s24 offen lds", tag=("dma", st))
        a("s_mov_b64 exec, -1")
        a("s_add_u32 s24, s24, 55296")
    def act(k):
        if k % 4 == 0 and k > 0:
            a("s_add_u32 s32, s32, 4096")
        a(f"buffer_load_dwordx4 a[{4*k}:{4*k+3}], v3, s[16:19], s32 offen offset:{(k%4)*1024}", tag=("act", k // 4))
    for u in range(4): dma_one(0, u)
    for k in range(0, 4): act(k)
    jobs = []
    for s_ in range(1, NST):
        jobs += [("d", s_, u, max(0, s_ - (NSLOT - 1))) for u in range(4)]
        jobs += [("a", s_, i, 0) for i in range(4)]
    bar_passed = [0]
    def issue_job():
        if not jobs: return
        kind, s_, i, mb = jobs[0]
        if mb > bar_passed[0]: return
        jobs.pop(0)
        if kind == "a": act(4 * s_ + i)
        else: dma_one(s_, i)
    for _ in range(4): issue_job()
    srd(a, 20, 4, 5, WS_HH, SZ_HH)
    a("v_bfe_u32 v6, v2, 4, 1")
    a("v_mul_u32_u24 v6, 55296, v6")
    a("v_lshrrev_b32 v7, 5, v2")
    a("v_lshlrev_b32 v7, 8, v7")
    a("v_add_u32 v6, v6, v7")
    a("v_and_b32 v7, 15, v2")
    a("v_lshl_add_u32 v6, v7, 4, v6")
    a("s_mul_i32 s33, s9, 110592")
    a("s_lshl_b32 s34, s10, 9")
    a("s_add_u32 s33, s33, s34")
    a("s_mov_b32 s34, 0xbfb8aa3b")
    a("s_mov_b32 s35, 0xbfb8aa3b")
    a("s_mov_b32 s36, 1.0")
    a("s_mov_b32 s37, 1.0")
    def wread(st, kk, u):
        buf = (st * 4 + kk) % 2
        r = WB + buf * 28 + u * 4
        a(f"ds_read_b64_tr_b16 v[{r}:{r+1}], v{LB} offset:{kk*3584 + u*32}")
        a(f"ds_read_b64_tr_b16 v[{r+2}:{r+3}], v{LB} offset:{kk*3584 + 896 + u*32}")
    def mfma(st, kk, u):
        buf = (st * 4 + kk) % 2
        r = WB + buf * 28 + u * 4
        k = st * 4 + kk
        c = "0" if k == 0 else f"v[{ACC+16*u}:{ACC+16*u+15}]"
        a(f"v_mfma_f32_32x32x16_bf16 v[{ACC+16*u}:{ACC+16*u+15}], v[{r}:{r+3}], a[{4*k}:{4*k+3}], {c}")
    stamp(a, 1)
    a.wait_vm({("dma", 0), ("act", 0)})
    a("s_barrier")
    stamp(a, 2)
    a(f"v_mov_b32 v{LB}, v208")
    for u in range(NU): wread(0, 0, u)
    NUM = NST - KM
    NF = 4 * NUM
    UB = [WB, WB + 32]
    def uread(u, f):
        st = KM + f // 4; kk = f % 4
        base = 7
        off = (st % NSLOT) * SLOT + kk * 3584 + u * 32 - (KM % NSLOT) * SLOT
        assert 0 <= off < 65536 - 896
        r = UB[u % 2] + 4 * f
        a(f"ds_read_b64_tr_b16 v[{r}:{r+1}], v{base} offset:{off}")
        a(f"ds_read_b64_tr_b16 v[{r+2}:{r+3}], v{base} offset:{off + 896}")
    a(f"v_add_u32 v7, {(KM % NSLOT) * SLOT}, v208")
    for st in range(KM):
        for kk in range(4):
            nst, nkk = (st, kk + 1) if kk < 3 else (st + 1, 0)
            if kk == 3 and st in (2, 5): stamp(a, 3 + st // 3)
            last_trans = (st == KM - 1 and kk == 3)
            if kk == 3:
                need_ = {("dma", nst), ("act", nst)}
                if last_trans:
                    assert not jobs
                    need_ = {("dma", q) for q in range(KM, NST)} | {("act", q) for q in range(KM, NST)}
                a.wait_vm(need_, extra="lgkmcnt(0)")
                a("s_barrier")
                bar_passed[0] = nst
                a(f"v_add_u32 v{LB}, {(nst % NSLOT) * SLOT}, v208")
            for u in range(NU):
                if kk != 3:
                    a(f"s_waitcnt lgkmcnt({2*(NU-1)})")
                mfma(st, kk, u)
                if not last_trans:
                    wread(nst, nkk, u)
                else:
                    uread(0, u)
                issue_job()
    stamp(a, 5)
    def epi_instrs(u):
        g = ACC + 16 * u; up = g + 8
        t = EP + (u % 2) * 12
        L = []
        for r in range(4): L.append(f"v_pk_mul_f32 v[{t+2*r}:{t+2*r+1}], v[{g+2*r}:{g+2*r+1}], s[34:35]")
        for r in range(8): L.append(f"v_exp_f32 v{t+r}, v{t+r}")
        for r in range(4): L.append(f"v_pk_add_f32 v[{t+2*r}:{t+2*r+1}], v[{t+2*r}:{t+2*r+1}], s[36:37]")
        for r in range(8): L.append(f"v_rcp_f32 v{t+r}, v{t+r}")
        for r in range(4): L.append(f"v_pk_mul_f32 v[{t+2*r}:{t+2*r+1}], v[{t+2*r}:{t+2*r+1}], v[{up+2*r}:{up+2*r+1}]")
        for r in range(4): L.append(f"v_cvt_pk_bf16_f32 v{t+8+r}, v{t+2*r}, v{t+2*r+1}")
        L.append(f"buffer_store_dwordx4 v[{t+8}:{t+11}], v6, s[20:23], s33 offen offset:{u*512}")
        return L
    for f in range(NU, NF): uread(0, f)
    pend = []
    for u in range(NU):
        b = UB[u % 2]
        for f in range(NF):
            k = KM * 4 + f
            a(f"s_waitcnt lgkmcnt({2*((NF-1-f) + (f if u + 1 < NU else 0))})")
            a(f"v_mfma_f32_32x32x16_bf16 v[{ACC+16*u}:{ACC+16*u+15}], v[{b+4*f}:{b+4*f+3}], a[{4*k}:{4*k+3}], v[{ACC+16*u}:{ACC+16*u+15}]")
            if u + 1 < NU: uread(u + 1, f)
            if f >= 1:
                for _ in range(5):
                    if pend: a(pend.pop(0))
        while pend: a(pend.pop(0))
        pend = epi_instrs(u)
    stamp(a, 6)
    while pend: a(pend.pop(0))
    stamp(a, 7)
    stamp_flush(a, 8, 4, 5)
    a.label("L_kc_end")
    a("s_endpgm")
    return a.text(), kernel_desc(name, 212, 160, 96), f"; @launch kernel={name} grid=(256,1,1) block=(256,1,1) lds={SLOT*NSLOT}"

def gen_kd(name="kd_kernel"):
    a = Asm()
    a.raw(kernel_header(name))
    P = 4; NS = 14
    a("s_cmp_ge_u32 s2, 256")
    a("s_cbranch_scc1 L_kd_end")
    stamp(a, 0)
    a("s_load_dwordx2 s[4:5], s[0:1], 88")
    a("s_load_dwordx2 s[36:37], s[0:1], 72")
    a("v_lshrrev_b32 v1, 6, v0")
    a("v_and_b32 v2, 63, v0")
    a("v_readfirstlane_b32 s6, v1")
    a("v_lshlrev_b32 v3, 4, v2")
    a("s_and_b32 s7, s2, 7")
    a("s_lshr_b32 s8, s2, 3")
    a("s_and_b32 s9, s7, 3")
    a("s_lshl_b32 s9, s9, 3")
    a("s_and_b32 s10, s8, 7")
    a("s_add_u32 s9, s9, s10")
    a("s_lshr_b32 s10, s7, 2")
    a("s_lshl_b32 s10, s10, 2")
    a("s_lshr_b32 s11, s8, 3")
    a("s_add_u32 s10, s10, s11")
    a("s_mul_i32 s11, s6, 14")
    a("s_cmp_eq_u32 s6, 3")
    a("s_cselect_b32 s32, 1, 0")
    a("s_sub_u32 s11, s11, s32")
    a("s_lshl_b32 s11, s11, 10")
    a("s_waitcnt lgkmcnt(0)")
    srd(a, 12, 4, 5, WS_WD, SZ_WD)
    srd(a, 16, 4, 5, WS_HH, SZ_HH)
    srd(a, 20, 4, 5, WS_H, SZ_ACT)
    srd(a, 24, 36, 37, 0, SZ_ACT)
    a("s_mul_i32 s28, s10, 276480")
    a("s_mul_i32 s29, s9, 221184")
    for cu in range(5):
        a(f"v_add_u32 v{4+cu}, s28, v3")
        if cu < 4: a("s_add_u32 s28, s28, 55296")
    for rt in range(4):
        a(f"s_add_u32 s30, s6, {rt}")
        a("s_and_b32 s30, s30, 3")
        a("s_mul_i32 s30, s30, 55296")
        a("s_add_u32 s30, s30, s29")
        a(f"v_add_u32 v{9+rt}, s30, v3")
    ACC = 16
    BUF = 96
    def load(st, i):
        b = BUF + (st % P) * 36
        if st % 4 == 0 and i == 0 and st > 0:
            a("s_add_u32 s11, s11, 4096")
        off = (st % 4) * 1024
        if i < 5:
            a(f"buffer_load_dwordx4 v[{b+4*i}:{b+4*i+3}], v{4+i}, s[12:15], s11 offen offset:{off}", tag=st)
        else:
            rt = i - 5
            a(f"buffer_load_dwordx4 v[{b+20+4*rt}:{b+20+4*rt+3}], v{9+rt}, s[16:19], s11 offen offset:{off}", tag=st)
    for st in range(P - 1):
        for i in range(9): load(st, i)
    for r in range(80): a(f"v_mov_b32 v{ACC+r}, 0")
    a("v_and_b32 v13, 15, v2")
    a("s_lshl_b32 s30, s9, 6")
    a("s_lshl_b32 s31, s6, 4")
    a("s_add_u32 s30, s30, s31")
    a("v_add_u32 v13, s30, v13")
    a("v_mul_u32_u24 v13, 1280, v13")
    a("v_lshrrev_b32 v14, 4, v2")
    a("v_lshlrev_b32 v14, 3, v14")
    a("s_mul_i32 s31, s10, 160")
    a("v_add3_u32 v13, v13, v14, s31")
    for st in range(NS):
        b = BUF + (st % P) * 36
        if st == NS - 1:
            a.wait_vm({st})
            a("s_cmp_ge_u32 s6, 2")
            a("s_cbranch_scc1 L_kd_skip")
        else:
            if st == 0: stamp(a, 1)
            a.wait_vm({st})
            if st in (0, 4, 8, 12): stamp(a, 2 + st // 4)
        n = 0
        for cu in range(5):
            for rt in range(4):
                t = ACC + (cu * 4 + rt) * 4
                a(f"v_mfma_f32_16x16x32_bf16 v[{t}:{t+3}], v[{b+4*cu}:{b+4*cu+3}], v[{b+20+4*rt}:{b+20+4*rt+3}], v[{t}:{t+3}]")
                if n % 2 == 0 and n // 2 < 9 and st + P - 1 < NS:
                    load(st + P - 1, n // 2)
                n += 1
    a.label("L_kd_skip")
    stamp(a, 6)
    HB = BUF
    a("s_nop 7")
    for cu in range(5):
        a(f"buffer_load_dwordx2 v[{HB+2*cu}:{HB+2*cu+1}], v13, s[20:23], 0 offen offset:{32*cu}", tag="h")
    for k in range(1, 4):
        a(f"s_add_u32 s32, s6, {k}")
        a("s_and_b32 s32, s32, 3")
        a("s_mul_i32 s32, s32, 15360")
        a(f"v_add_u32 v14, s32, v3")
        for cu in range(5):
            t = ACC + (cu * 4 + k) * 4
            a(f"ds_write_b128 v14, v[{t}:{t+3}] offset:{((k-1)*5+cu)*1024}")
    a("s_mul_i32 s32, s6, 15360")
    a("v_add_u32 v14, s32, v3")
    a("s_waitcnt lgkmcnt(0)")
    a("s_barrier")
    RB = 112
    for k in range(3):
        for cu in range(5):
            r = RB + (k * 5 + cu) * 4
            a(f"ds_read_b128 v[{r}:{r+3}], v14 offset:{(k*5+cu)*1024}")
    def OWNR(cu): return ACC + cu * 16
    for k in range(3):
        a(f"s_waitcnt lgkmcnt({10 - 5*k})")
        for cu in range(5):
            r = RB + (k * 5 + cu) * 4; o = OWNR(cu)
            a(f"v_pk_add_f32 v[{o}:{o+1}], v[{o}:{o+1}], v[{r}:{r+1}]")
            a(f"v_pk_add_f32 v[{o+2}:{o+3}], v[{o+2}:{o+3}], v[{r+2}:{r+3}]")
    a.wait_vm({"h"})
    for cu in range(5):
        o = OWNR(cu); h = HB + 2 * cu; t = RB + cu * 8
        a(f"v_cvt_pk_bf16_f32 v{t}, v{o}, v{o+1}")
        a(f"v_cvt_pk_bf16_f32 v{t+1}, v{o+2}, v{o+3}")
        a(f"v_lshlrev_b32 v{t+2}, 16, v{t}")
        a(f"v_and_b32 v{t+3}, 0xffff0000, v{t}")
        a(f"v_lshlrev_b32 v{t+4}, 16, v{t+1}")
        a(f"v_and_b32 v{t+5}, 0xffff0000, v{t+1}")
        a(f"v_lshlrev_b32 v{o}, 16, v{h}")
        a(f"v_and_b32 v{o+1}, 0xffff0000, v{h}")
        a(f"v_lshlrev_b32 v{o+2}, 16, v{h+1}")
        a(f"v_and_b32 v{o+3}, 0xffff0000, v{h+1}")
        for q in range(4): a(f"v_add_f32 v{o+q}, v{o+q}, v{t+2+q}")
        a(f"v_cvt_pk_bf16_f32 v{t}, v{o}, v{o+1}")
        a(f"v_cvt_pk_bf16_f32 v{t+1}, v{o+2}, v{o+3}")
        a(f"buffer_store_dwordx2 v[{t}:{t+1}], v13, s[24:27], 0 offen offset:{32*cu}")
    stamp(a, 7)
    stamp_flush(a, 8, 4, 5)
    a.label("L_kd_end")
    a("s_endpgm")
    return a.text(), kernel_desc(name, 240, 0, 96), f"; @launch kernel={name} grid=(256,1,1) block=(256,1,1) lds=61440"

def assemble(parts):
    s = "\n".join(p[2] for p in parts) + "\n"
    s += '.amdgcn_target "amdgcn-amd-amdhsa--gfx950"\n.text\n'
    for p in parts: s += p[0]
    s += '.section .rodata,"a"\n'
    for p in parts: s += ".p2align 6\n" + p[1]
    return s

if __name__ == "__main__":
    import sys
    if len(sys.argv) > 2: PROF = True
    open(sys.argv[1], "w").write(assemble([gen_prep(), gen_kc(), gen_kd()]))
```

```python
import numpy as np, struct
from dsl import *
import gen_gemm as G
from gen_gemm import srd, WS_U, WS_H, WS_LN2, SZ_ACT, stamp, stamp_flush

def f16bits(x):
    return int(np.float16(x).view(np.uint16))
def pack_f16(vals):
    return [f16bits(vals[2*i]) | (f16bits(vals[2*i+1]) << 16) for i in range(len(vals)//2)]
def f32bits(x):
    return int(np.float32(x).view(np.uint32))
def emit_table(label, dwords):
    s = f".p2align 8\n{label}:\n"
    for i in range(0, len(dwords), 8):
        s += ".long " + ", ".join(f"0x{d:08x}" for d in dwords[i:i+8]) + "\n"
    return s

def klist16(g, ks):
    return [32*ks + 4*g + j for j in range(4)] + [32*ks + 16 + 4*g + j for j in range(4)]

def ka_table():
    d = []
    for w in range(4):
        for ks in range(2):
            for l in range(64):
                n, g = l % 16, l // 16
                r = 16*w + n; gs, ri = r // 2, r % 2
                vals = []
                for s1 in klist16(g, ks):
                    if gs == 0: v = 1.0 if ri == 0 else (-1.0)**s1
                    else:
                        ang = 2*np.pi*((gs*s1) % 64)/64
                        v = np.cos(ang) if ri == 0 else -np.sin(ang)
                    vals.append(v)
                d += pack_f16(vals)
    return d

def bf16r(a, dst, src):
    a(f"v_cvt_pk_bf16_f32 v{dst}, v{src}, v{src}")
    a(f"v_lshlrev_b32 v{dst}, 16, v{dst}")

def gen_ka(name="ka_kernel", with_prep=True, prep_n=405):
    a = Asm()
    a.raw(kernel_header(name))
    if with_prep:
        a("s_cmp_ge_u32 s2, 256")
        a("s_cbranch_scc1 L_ka_prep")
    else:
        a("s_cmp_ge_u32 s2, 256")
        a("s_cbranch_scc1 L_ka_end")
    stamp(a, 0)
    a("s_load_dwordx2 s[4:5], s[0:1], 0")
    a("s_load_dwordx2 s[10:11], s[0:1], 88")
    a("s_getpc_b64 s[20:21]")
    a.label("L_ka_pc")
    a("s_add_u32 s20, s20, T_ka-L_ka_pc")
    a("s_addc_u32 s21, s21, 0")
    a("v_lshrrev_b32 v1, 6, v0")
    a("v_and_b32 v2, 63, v0")
    a("v_readfirstlane_b32 s6, v1")
    a("v_lshrrev_b32 v3, 4, v2")
    a("v_and_b32 v4, 15, v2")
    a("s_and_b32 s7, s2, 7")
    a("s_lshr_b32 s8, s2, 3")
    a("s_lshr_b32 s9, s8, 3")
    a("s_lshl_b32 s9, s9, 3")
    a("s_add_u32 s7, s7, s9")
    a("s_and_b32 s8, s8, 7")
    a("v_lshlrev_b32 v7, 4, v0")
    a("v_lshlrev_b32 v8, 10, v1")
    a("v_add_u32 v7, v7, v8")
    a("global_load_dwordx4 v[128:131], v7, s[20:21]", tag="F")
    a("global_load_dwordx4 v[132:135], v7, s[20:21] offset:1024", tag="F")
    a("s_lshl_b32 s9, s6, 9")
    a("s_add_u32 s9, s9, s7")
    a("v_lshlrev_b32 v5, 5, v3")
    a("v_add_u32 v5, s9, v5")
    a("v_mul_u32_u24 v5, 1280, v5")
    a("v_min_u32 v9, 9, v4")
    a("v_lshlrev_b32 v9, 4, v9")
    a("s_mul_i32 s9, s8, 160")
    a("v_add3_u32 v6, v5, v9, s9")
    a("v_lshl_add_u32 v5, v4, 4, v5")
    a("s_mov_b32 s24, 0")
    a("s_mov_b32 s25, 163840")
    a("s_mov_b32 s26, 327680")
    a("s_mov_b32 s27, 491520")
    a("s_waitcnt lgkmcnt(0)")
    srd(a, 12, 4, 5, 0, SZ_ACT)
    srd(a, 16, 10, 11, WS_U, SZ_ACT)
    XD = 32; OWN = 112
    for it in range(4):
        for j in range(5):
            r = XD + (it*5 + j)*4
            a(f"buffer_load_dwordx4 v[{r}:{r+3}], v5, s[12:15], s{24+it} offen offset:{256*j}", tag=("x", it))
    for it in range(4):
        a(f"buffer_load_dwordx4 v[{OWN+4*it}:{OWN+4*it+3}], v6, s[12:15], s{24+it} offen", tag=("o", it))
    a("s_mul_i32 s9, s6, 2560")
    a("v_mul_u32_u24 v10, 160, v3")
    a("v_add3_u32 v10, v10, v9, s9")
    a("v_lshrrev_b32 v11, 2, v2")
    a("v_mul_u32_u24 v11, 160, v11")
    a("v_and_b32 v12, 3, v2")
    a("v_lshl_add_u32 v11, v12, 3, v11")
    a("v_lshlrev_b32 v12, 5, v4")
    a("s_lshl_b32 s9, s6, 9")
    a("s_add_u32 s9, s9, s7")
    a("v_add_u32 v12, s9, v12")
    a("v_mul_u32_u24 v12, 1280, v12")
    a("s_mul_i32 s9, s8, 160")
    a("v_lshlrev_b32 v13, 3, v3")
    a("v_add3_u32 v12, v12, v13, s9")
    a("s_mov_b32 s22, 0x3f803f80")
    a("s_mov_b32 s23, 0x3acccccd")
    a("s_mov_b32 s28, 0x3727c5ac")
    for it in range(4):
        a(f"v_mov_b32 v{16+it}, 0"); a(f"v_mov_b32 v{20+it}, 0")
    stamp(a, 1)
    for it in range(4):
        a.wait_vm({("x", it)})
        for k in range(20):
            r = XD + it*20 + k
            a(f"v_dot2c_f32_bf16 v{16+it}, s22, v{r}")
            a(f"v_dot2c_f32_bf16 v{20+it}, v{r}, v{r}")
    stamp(a, 2)
    for sh in (8, 4, 2, 1):
        for k in range(8):
            a(f"v_add_f32_dpp v{16+k}, v{16+k}, v{16+k} row_ror:{sh} row_mask:0xf bank_mask:0xf")
    for it in range(4):
        a(f"v_mul_f32 v{16+it}, s23, v{16+it}")
        a(f"v_mul_f32 v{20+it}, s23, v{20+it}")
    for it in range(4):
        a(f"v_fma_f32 v{20+it}, -v{16+it}, v{16+it}, v{20+it}")
    for it in range(4):
        a(f"v_max_f32 v{20+it}, 0, v{20+it}")
    for it in range(4): bf16r(a, 16+it, 16+it)
    for it in range(4): bf16r(a, 20+it, 20+it)
    for it in range(4): a(f"v_add_f32 v{20+it}, s28, v{20+it}")
    for it in range(4): bf16r(a, 20+it, 20+it)
    for it in range(4): a(f"v_sqrt_f32 v{20+it}, v{20+it}")
    for it in range(4): bf16r(a, 20+it, 20+it)
    for it in range(4): a(f"v_rcp_f32 v{20+it}, v{20+it}")
    for it in range(4):
        a.wait_vm({("o", it)})
        T = 32 + it*16
        o = OWN + 4*it
        for k in range(4):
            a(f"v_lshlrev_b32 v{T+2*k}, 16, v{o+k}")
            a(f"v_and_b32 v{T+2*k+1}, 0xffff0000, v{o+k}")
        for k in range(8): a(f"v_sub_f32 v{T+k}, v{T+k}, v{16+it}")
        for k in range(4): a(f"v_cvt_pk_bf16_f32 v{T+8+k}, v{T+2*k}, v{T+2*k+1}")
        for k in range(4):
            a(f"v_lshlrev_b32 v{T+2*k}, 16, v{T+8+k}")
            a(f"v_and_b32 v{T+2*k+1}, 0xffff0000, v{T+8+k}")
        for k in range(8): a(f"v_mul_f32 v{T+k}, v{T+k}, v{20+it}")
        for k in range(4): a(f"v_cvt_pk_bf16_f32 v{T+8+k}, v{T+2*k}, v{T+2*k+1}")
        for k in range(4):
            a(f"v_lshlrev_b32 v{T+2*k}, 16, v{T+8+k}")
            a(f"v_and_b32 v{T+2*k+1}, 0xffff0000, v{T+8+k}")
        for k in range(4): a(f"v_cvt_pk_f16_f32 v{T+8+k}, v{T+2*k}, v{T+2*k+1}")
        a(f"ds_write_b128 v10, v[{T+8}:{T+11}] offset:{it*640}")
    a("s_waitcnt lgkmcnt(0)")
    a("s_barrier")
    stamp(a, 3)
    AF = 32
    for mt in range(5):
        for ks in range(2):
            r = AF + (mt*2 + ks)*4
            a(f"ds_read_b64_tr_b16 v[{r}:{r+1}], v11 offset:{ks*5120 + mt*32}")
            a(f"ds_read_b64_tr_b16 v[{r+2}:{r+3}], v11 offset:{ks*5120 + 2560 + mt*32}")
    a.wait_vm({"F"})
    DD = 80
    for mt in range(5):
        a(f"s_waitcnt lgkmcnt({max(0, 16 - 4*mt)})" if 16 - 4*mt <= 15 else "s_waitcnt lgkmcnt(15)")
        r = AF + mt*8
        a(f"v_mfma_f32_16x16x32_f16 v[{DD+4*mt}:{DD+4*mt+3}], v[{r}:{r+3}], v[128:131], 0")
        a(f"v_mfma_f32_16x16x32_f16 v[{DD+4*mt}:{DD+4*mt+3}], v[{r+4}:{r+7}], v[132:135], v[{DD+4*mt}:{DD+4*mt+3}]")
    for mt in range(5):
        d = DD + 4*mt; p = 100 + 2*mt
        a(f"v_cvt_pk_f16_f32 v{p}, v{d}, v{d+1}")
        a(f"v_cvt_pk_f16_f32 v{p+1}, v{d+2}, v{d+3}")
        a(f"buffer_store_dwordx2 v[{p}:{p+1}], v12, s[16:19], 0 offen offset:{32*mt}")
    stamp(a, 4)
    stamp_flush(a, 5, 10, 11)
    if with_prep:
        a("s_branch L_ka_end")
        a.label("L_ka_prep")
        a(f"s_cmp_ge_u32 s2, {256 + prep_n}")
        a("s_cbranch_scc1 L_ka_end")
        a("s_sub_u32 s3, s2, 256")
        G.prep_body(a, 3, "L_ka_end", tag="ka")
    a.label("L_ka_end")
    a("s_endpgm")
    txt = a.text() + emit_table("T_ka", ka_table())
    grid = 256 + prep_n if with_prep else 256
    return txt, kernel_desc(name, 136, 0, 96), f"; @launch kernel={name} grid=({grid},1,1) block=(256,1,1) lds=19456"

def kb_table():
    fr = []
    def frag16(fn):
        d = []
        for l in range(64): d += pack_f16(fn(l))
        return d
    for kind in ("c", "s", "n"):
        for ks in range(2):
            def fn(l):
                e1, h = l % 32, l // 32
                out = []
                for j in range(8):
                    d1 = 16*ks + 8*h + j
                    ang = 2*np.pi*((e1*d1) % 32)/32
                    out.append({"c": np.cos(ang), "s": np.sin(ang), "n": -np.sin(ang)}[kind])
                return out
            fr.append(frag16(fn))
    for kind in ("c", "s"):
        for q in range(3):
            d = []
            for l in range(64):
                e1, h = l % 32, l // 32
                for rr in range(4):
                    d2 = 8*q + 4*h + rr
                    ang = 2*np.pi*(e1*d2)/640
                    v = (np.cos(ang) if kind == "c" else np.sin(ang)) if d2 < 20 else 0.0
                    d.append(f32bits(v))
            fr.append(d)
    for ks in range(3):
        def fn(l):
            e2, h = l % 32, l // 32
            out = []
            for j in range(8):
                if ks < 2:
                    d2 = 8*(j//4) + 4*h + j % 4; kind = "c" if ks == 0 else "s"
                else:
                    d2 = 16 + 4*h + j % 4; kind = "c" if j < 4 else "s"
                if e2 >= 20 or d2 >= 20: out.append(0.0); continue
                ang = 2*np.pi*((e2*d2) % 20)/20
                out.append(64.0*(np.cos(ang) if kind == "c" else np.sin(ang)))
            return out
        fr.append(frag16(fn))
    d = []
    for f in fr: d += f
    return d

def gen_kb(name="kb_kernel", prep_from=None, prep_n=0):
    a = Asm()
    a.raw(kernel_header(name))
    YS = 1312; TBL = 81920; RBS = 6144; MIR = 2944
    a("s_cmp_ge_u32 s2, 256")
    a("s_cbranch_scc1 L_kb_prep" if prep_n else "s_cbranch_scc1 L_kb_end")
    stamp(a, 0)
    a("v_lshrrev_b32 v1, 6, v0")
    a("s_load_dwordx2 s[4:5], s[0:1], 0")
    a("s_load_dwordx2 s[10:11], s[0:1], 88")
    a("v_readfirstlane_b32 s6, v1")
    a("v_and_b32 v2, 63, v0")
    a("s_getpc_b64 s[20:21]")
    a.label("L_kb_pc")
    a("s_add_u32 s20, s20, T_kb-L_kb_pc")
    a("s_addc_u32 s21, s21, 0")
    a("s_mov_b32 s22, 15360")
    a("s_mov_b32 s23, 0x00020000")
    a("s_cmp_eq_u32 s6, 4")
    a("s_cselect_b32 s3, s2, 0")
    a("s_cmp_lg_u32 s3, 0")
    a("s_cbranch_scc1 L_kb_end")
    a("v_lshrrev_b32 v3, 4, v2")
    a("v_and_b32 v4, 15, v2")
    a("v_lshlrev_b32 v6, 4, v2")
    a("s_and_b32 s7, s2, 7")
    a("s_lshr_b32 s8, s2, 3")
    a("s_lshr_b32 s9, s8, 3")
    a("s_lshl_b32 s9, s9, 3")
    a("s_add_u32 s7, s7, s9")
    a("s_and_b32 s8, s8, 7")
    a("s_lshl_b32 s24, s7, 6")
    a("s_lshl_b32 s25, s6, 4")
    a("s_add_u32 s24, s24, s25")
    a("s_mul_i32 s24, s24, 1280")
    a("s_mul_i32 s25, s6, 20480")
    a("v_lshlrev_b32 v20, 1, v3")
    a("v_xor_b32 v20, v20, v4")
    a("v_xor_b32 v21, 8, v20")
    a("v_mul_u32_u24 v19, 1280, v3")
    a("v_lshl_add_u32 v20, v20, 4, v19")
    a("v_lshl_add_u32 v21, v21, 4, v19")
    a("s_waitcnt lgkmcnt(0)")
    srd(a, 12, 10, 11, WS_U, SZ_ACT)
    srd(a, 16, 4, 5, 0, SZ_ACT)
    a("s_cmp_eq_u32 s6, 4")
    a("s_cbranch_scc1 L_kb_noload")
    for it in range(4):
        for j in range(5):
            a(f"s_add_u32 m0, s25, {it*5120 + j*1024}")
            a(f"s_add_u32 s26, s24, {it*5120 + j*256}")
            a(f"buffer_load_dwordx4 v{20 + it % 2}, s[12:15], s26 offen lds", tag="u")
    a("s_lshl_b32 s26, s6, 12")
    for f in range(4):
        a(f"s_add_u32 s27, s26, {f*1024}")
        a("s_min_u32 s27, s27, 14336")
        a(f"s_add_u32 m0, s27, {TBL}")
        a("buffer_load_dwordx4 v6, s[20:23], s27 offen lds", tag="u")
    a.label("L_kb_noload")
    a("s_lshl_b32 s9, s8, 8")
    a("s_add_u32 s9, s9, s7")
    a("s_and_b32 s26, s8, 3")
    a("s_lshl_b32 s26, s26, 8")
    a("s_lshr_b32 s27, s8, 2")
    a("s_lshl_b32 s28, s27, 5")
    a("s_add_u32 s26, s26, s28")
    a("s_cmp_eq_u32 s7, 0")
    a("s_cselect_b32 s9, s26, s9")
    a("s_mov_b32 s29, 0x3c800000")
    a("s_mov_b32 s30, 0x3c800000")
    a("s_mov_b32 s31, 0xbe800000")
    a("s_cbranch_scc0 L_kb_gen")
    a("s_mov_b32 s31, 0")
    a("s_cmp_eq_u32 s27, 1")
    a("s_cselect_b32 s29, 0, s29")
    a("s_cselect_b32 s30, s30, 0")
    a.label("L_kb_gen")
    srd(a, 32, 10, 11, WS_H, SZ_ACT)
    srd(a, 36, 10, 11, WS_LN2, SZ_ACT)
    a("s_lshl_b32 s26, s6, 6")
    a("s_add_u32 s40, s9, s26")
    a("s_cmp_eq_u32 s6, 4")
    a("s_cselect_b32 s40, 1024, s40")
    a("s_sub_u32 s41, 2048, s40")
    a("s_and_b32 s41, s41, 2047")
    a("v_mov_b32 v7, s40")
    a("v_mov_b32 v8, s41")
    a("v_cmp_gt_u32 vcc, 32, v2")
    a("v_cndmask_b32 v7, v8, v7, vcc")
    a("v_and_b32 v8, 31, v2")
    a("v_mul_u32_u24 v9, 1280, v7")
    a("v_lshl_add_u32 v9, v8, 4, v9")
    a("v_cmp_gt_u32 s[42:43], 16, v8")
    a("v_add_u32 v10, 1024, v9")
    a("v_cndmask_b32 v10, v9, v10, s[42:43]")
    XR = 150
    a(f"buffer_load_dwordx4 v[{XR+2}:{XR+5}], v9, s[16:19], 0 offen", tag="x")
    a(f"buffer_load_dwordx4 v[{XR+6}:{XR+9}], v9, s[16:19], 0 offen offset:512", tag="x")
    a(f"buffer_load_dwordx4 v[{XR+10}:{XR+13}], v10, s[16:19], 0 offen", tag="x")
    XR = XR + 2
    a("v_lshrrev_b32 v11, 5, v7")
    a("v_mul_u32_u24 v11, 40960, v11")
    a("v_and_b32 v12, 31, v7")
    a("v_lshl_add_u32 v11, v12, 4, v11")
    a("v_lshl_add_u32 v11, v8, 9, v11")
    a("v_lshrrev_b32 v13, 1, v4")
    a("v_cmp_eq_u32 vcc, 4, v13")
    a("v_lshlrev_b32 v13, 6, v13")
    a("v_add_u32 v13, s9, v13")
    a("v_mov_b32 v14, 0x400")
    a("v_cndmask_b32 v13, v13, v14, vcc")
    a("v_and_b32 v14, 1, v4")
    a("v_cvt_f32_u32 v14, v14")
    a("v_mul_f32 v14, 0.25, v14")
    a("v_add_f32 v15, s31, v14")
    a("v_cmp_gt_u32 vcc, 10, v4")
    a("v_mov_b32 v16, s29")
    a("v_mov_b32 v17, s30")
    a("v_cndmask_b32 v16, 0, v16, vcc")
    a("v_cndmask_b32 v17, 0, v17, vcc")
    a("v_lshlrev_b32 v18, 2, v3")
    a("s_mov_b32 s44, 0x3a000000")
    BM = 140
    for j in range(8):
        off = j if j < 4 else 16 + j - 4
        a(f"v_add_u32 v{24+j}, {off}, v18")
    for j in range(8): a(f"v_mul_u32_u24 v{24+j}, v{24+j}, v13")
    for j in range(8): a(f"v_and_b32 v{24+j}, 0x7ff, v{24+j}")
    for j in range(8): a(f"v_cvt_f32_u32 v{24+j}, v{24+j}")
    for j in range(8):
        a(f"v_fma_f32 v{32+j}, v{24+j}, s44, v14")
        a(f"v_fma_f32 v{40+j}, v{24+j}, s44, v15")
    for j in range(16): a(f"v_cos_f32 v{32+j}, v{32+j}")
    for j in range(8):
        a(f"v_mul_f32 v{32+j}, v{32+j}, v16")
        a(f"v_mul_f32 v{40+j}, v{40+j}, v17")
    for j in range(8): a(f"v_cvt_pk_f16_f32 v{BM+j}, v{32+2*j}, v{32+2*j+1}")
    a("v_bfe_u32 v23, v2, 2, 3")
    a("v_lshlrev_b32 v23, 1, v23")
    a("v_bfe_u32 v24, v2, 1, 1")
    a("s_lshl_b32 s26, s6, 2")
    a("v_add_u32 v24, s26, v24")
    a("v_add_u32 v25, 2, v24")
    a("v_xor_b32 v24, v24, v23")
    a("v_xor_b32 v25, v25, v23")
    a("v_mul_u32_u24 v22, 5120, v3")
    a("v_bfe_u32 v26, v2, 2, 2")
    a("v_lshl_add_u32 v22, v26, 8, v22")
    a("v_and_b32 v26, 1, v2")
    a("v_lshl_add_u32 v22, v26, 3, v22")
    a("v_lshl_add_u32 v24, v24, 4, v22")
    a("v_lshl_add_u32 v25, v25, 4, v22")
    a("v_add_u32 v26, 40960, v24")
    a("v_add_u32 v27, 40960, v25")
    a(f"v_mul_u32_u24 v20, {YS}, v4")
    a("s_lshl_b32 s26, s6, 6")
    a("v_lshl_add_u32 v20, v3, 3, v20")
    a("v_add_u32 v20, s26, v20")
    a("v_lshrrev_b32 v21, 5, v2")
    a("v_bfe_u32 v22, v2, 2, 2")
    a("v_lshl_add_u32 v21, v21, 3, v22")
    a("v_mul_u32_u24 v21, 40, v21")
    a("v_bfe_u32 v22, v2, 4, 1")
    a("v_lshl_add_u32 v21, v22, 5, v21")
    a("v_and_b32 v22, 3, v2")
    a("v_lshl_add_u32 v21, v22, 3, v21")
    a(f"s_mul_i32 s26, s6, {2*YS}")
    a("v_add_u32 v21, s26, v21")
    a(f"v_add_u32 v28, {TBL}, v6")
    stamp(a, 1)
    a("s_waitcnt vmcnt(3)")
    a.vm = ["x", "x", "x"]
    a("s_barrier")
    stamp(a, 2)
    a("s_cmp_eq_u32 s6, 4")
    a("s_cbranch_scc1 L_kb_skipB")
    AF = 56
    DD = 164
    tiles = [(ap, b) for ap in range(5) for b in range(2)]
    for ti, (ap, b) in enumerate(tiles):
        for ks in range(2):
            r = AF + (ti*2 + ks)*4
            for half in range(2):
                a(f"ds_read_b64_tr_b16 v[{r+2*half}:{r+2*half+1}], v{24+b+2*ks} offset:{half*20480 + ap*1024}")
    for ti in range(10):
        rem = 40 - 4*(ti+1)
        a(f"s_waitcnt lgkmcnt({min(rem, 15)})")
        r = AF + ti*8; d = DD + 4*ti
        a(f"v_mfma_f32_16x16x32_f16 v[{d}:{d+3}], v[{r}:{r+3}], v[{BM}:{BM+3}], 0")
        a(f"v_mfma_f32_16x16x32_f16 v[{d}:{d+3}], v[{r+4}:{r+7}], v[{BM+4}:{BM+7}], v[{d}:{d+3}]")
    YP = 56
    for ti in range(10):
        d = DD + 4*ti
        a(f"v_cvt_pk_f16_f32 v{YP+2*ti}, v{d}, v{d+1}")
        a(f"v_cvt_pk_f16_f32 v{YP+2*ti+1}, v{d+2}, v{d+3}")
    a.label("L_kb_skipB")
    a("s_barrier")
    a("s_cmp_eq_u32 s6, 4")
    a("s_cbranch_scc1 L_kb_skipY")
    a("v_cmp_gt_u32 vcc, 10, v4")
    a("s_and_saveexec_b64 s[46:47], vcc")
    for ti, (ap, b) in enumerate(tiles):
        a(f"ds_write_b64 v20, v[{YP+2*ti}:{YP+2*ti+1}] offset:{256*ap + 32*b}")
    a("s_mov_b64 exec, s[46:47]")
    a.label("L_kb_skipY")
    TB = 164
    for f in range(6):
        a(f"ds_read_b128 v[{TB+4*f}:{TB+4*f+3}], v28 offset:{1024*f}")
    a("s_waitcnt lgkmcnt(6)")
    a("s_barrier")
    stamp(a, 3)
    BC, BS, BN, TWC, TWS, H2 = TB, TB+8, TB+16, TB+24, TB+36, TB+48
    for p in range(2):
        for ks in range(2):
            r = 56 + (p*2 + ks)*4
            a(f"ds_read_b64_tr_b16 v[{r}:{r+1}], v21 offset:{p*YS + ks*640}")
            a(f"ds_read_b64_tr_b16 v[{r+2}:{r+3}], v21 offset:{p*YS + ks*640 + 160}")
    for f in range(6, 15):
        a(f"ds_read_b128 v[{TB+4*f}:{TB+4*f+3}], v28 offset:{1024*f}")
    a("s_waitcnt lgkmcnt(9)")
    GR, GI = 72, 88
    AR0, AR1, AI0, AI1 = 56, 60, 64, 68
    def mm(d, A, B, first):
        c = "0" if first else f"v[{d}:{d+15}]"
        a(f"v_mfma_f32_32x32x16_f16 v[{d}:{d+15}], v[{A}:{A+3}], v[{B}:{B+3}], {c}")
    mm(GR, AR0, BC, True);   mm(GI, AI0, BC, True)
    mm(GR, AR1, BC+4, False); mm(GI, AI1, BC+4, False)
    mm(GR, AI0, BS, False);  mm(GI, AR0, BN, False)
    mm(GR, AI1, BS+4, False); mm(GI, AR1, BN+4, False)
    a(f"s_mul_i32 s26, s6, {RBS}")
    a("s_add_u32 s26, s26, 16384")
    a("v_and_b32 v22, 31, v2")
    a("v_lshrrev_b32 v23, 5, v2")
    a("v_mul_u32_u24 v24, 144, v22")
    a("v_lshl_add_u32 v24, v23, 4, v24")
    a(f"s_add_u32 s27, s26, {MIR + 19*144}")
    a("v_sub_u32 v25, s27, v24")
    a("v_add_u32 v24, s26, v24")
    a("v_lshlrev_b32 v26, 4, v23")
    a("v_sub_u32 v26, 16, v26")
    a("v_add_u32 v26, v25, v26")
    a("v_lshrrev_b32 v27, 2, v8")
    a("v_mul_u32_u24 v27, 144, v27")
    a("v_and_b32 v29, 3, v8")
    a("v_lshl_add_u32 v27, v29, 5, v27")
    a(f"v_mul_u32_u24 v29, {MIR}, v23")
    a("v_add3_u32 v27, v27, v29, s26")
    a("v_add_u32 v29, 2304, v27")
    a("v_cndmask_b32 v29, v27, v29, s[42:43]")
    a("s_waitcnt lgkmcnt(0)")
    T = 104
    for r in range(6): a(f"v_pk_mul_f32 v[{T+2*r}:{T+2*r+1}], v[{GR+2*r}:{GR+2*r+1}], v[{TWC+2*r}:{TWC+2*r+1}]")
    for r in range(6): a(f"v_pk_mul_f32 v[{T+12+2*r}:{T+12+2*r+1}], v[{GI+2*r}:{GI+2*r+1}], v[{TWC+2*r}:{TWC+2*r+1}]")
    for r in range(6): a(f"v_pk_fma_f32 v[{T+2*r}:{T+2*r+1}], v[{GI+2*r}:{GI+2*r+1}], v[{TWS+2*r}:{TWS+2*r+1}], v[{T+2*r}:{T+2*r+1}]")
    for r in range(6): a(f"v_pk_fma_f32 v[{T+12+2*r}:{T+12+2*r+1}], v[{GR+2*r}:{GR+2*r+1}], v[{TWS+2*r}:{TWS+2*r+1}], v[{T+12+2*r}:{T+12+2*r+1}] neg_lo:[1,0,0] neg_hi:[1,0,0]")
    P = 56
    for j in range(4): a(f"v_cvt_pk_f16_f32 v{P+j}, v{T+2*j}, v{T+2*j+1}")
    for j in range(4): a(f"v_cvt_pk_f16_f32 v{P+4+j}, v{T+12+2*j}, v{T+12+2*j+1}")
    for j in range(2): a(f"v_cvt_pk_f16_f32 v{P+8+j}, v{T+8+2*j}, v{T+8+2*j+1}")
    for j in range(2): a(f"v_cvt_pk_f16_f32 v{P+10+j}, v{T+20+2*j}, v{T+20+2*j+1}")
    YO = 72
    mm(YO, P, H2, True); mm(YO, P+4, H2+4, False); mm(YO, P+8, H2+8, False)
    a("s_mov_b64 s[48:49], -1")
    a("s_and_b32 s27, s40, 1023")
    a("s_cmp_eq_u32 s27, 0")
    a("s_cselect_b32 s49, 0, s49")
    a("s_and_b64 s[50:51], s[48:49], s[42:43]")
    a("s_mov_b32 s52, 0x3f803f80")
    a("s_mov_b32 s53, 0x3acccccd")
    a("s_mov_b32 s54, 16384")
    a("s_mov_b32 s55, 32768")
    a("v_cmp_gt_u32 vcc, 20, v22")
    a("s_and_saveexec_b64 s[46:47], vcc")
    for jj in range(4):
        a(f"ds_write_b128 v24, v[{YO+4*jj}:{YO+4*jj+3}] offset:{32*jj}")
    for jj in range(4):
        for rr in range(4):
            base = 26 if (jj == 0 and rr == 0) else 25
            a(f"ds_write_b32 v{base}, v{YO+4*jj+rr} offset:{(32 - 8*jj - rr)*4}")
    a("v_cmp_eq_u32 vcc, 0, v2")
    a("s_and_b64 exec, exec, vcc")
    a(f"ds_write_b32 v24, v{YO} offset:{MIR}")
    a("s_mov_b64 exec, s[46:47]")
    XU = 104
    a.wait_vm({"x"})
    for k in range(12):
        a(f"v_lshlrev_b32 v{XU+2*k}, 16, v{XR+k}")
        a(f"v_and_b32 v{XU+2*k+1}, 0xffff0000, v{XR+k}")
    a("s_waitcnt lgkmcnt(0)")
    YV = 56
    a(f"ds_read_b128 v[{YV}:{YV+3}], v27")
    a(f"ds_read_b128 v[{YV+4}:{YV+7}], v27 offset:16")
    a(f"ds_read_b128 v[{YV+8}:{YV+11}], v27 offset:1152")
    a(f"ds_read_b128 v[{YV+12}:{YV+15}], v27 offset:1168")
    a(f"ds_read_b128 v[{YV+16}:{YV+19}], v29")
    a(f"ds_read_b128 v[{YV+20}:{YV+23}], v29 offset:16")
    stamp(a, 4)
    for k in range(4): a(f"v_mov_b32 v{32+k}, 0")
    HP = 80
    for k in range(12):
        if k % 2 == 0: a(f"s_waitcnt lgkmcnt({5 - k//2})")
        a(f"v_pk_add_f32 v[{YV+2*k}:{YV+2*k+1}], v[{YV+2*k}:{YV+2*k+1}], v[{XU+2*k}:{XU+2*k+1}]")
    for k in range(12): a(f"v_cvt_pk_bf16_f32 v{HP+k}, v{YV+2*k}, v{YV+2*k+1}")
    for k in range(12):
        o = 0 if k < 8 else 2
        a(f"v_dot2c_f32_bf16 v{32+o}, s52, v{HP+k}")
        a(f"v_dot2c_f32_bf16 v{33+o}, v{HP+k}, v{HP+k}")
    for k in range(12):
        a(f"v_lshlrev_b32 v{YV+2*k}, 16, v{HP+k}")
        a(f"v_and_b32 v{YV+2*k+1}, 0xffff0000, v{HP+k}")
    a("v_cndmask_b32 v34, 0, v34, s[42:43]")
    a("v_cndmask_b32 v35, 0, v35, s[42:43]")
    a("v_pk_add_f32 v[32:33], v[32:33], v[34:35]")
    for sh in (8, 4, 2, 1):
        a(f"v_add_f32_dpp v32, v32, v32 row_ror:{sh} row_mask:0xf bank_mask:0xf")
        a(f"v_add_f32_dpp v33, v33, v33 row_ror:{sh} row_mask:0xf bank_mask:0xf")
    a("ds_swizzle_b32 v34, v32 offset:0x401F")
    a("ds_swizzle_b32 v35, v33 offset:0x401F")
    a("s_mov_b64 exec, s[48:49]")
    a(f"buffer_store_dwordx4 v[{HP}:{HP+3}], v9, s[32:35], 0 offen")
    a(f"buffer_store_dwordx4 v[{HP+4}:{HP+7}], v9, s[32:35], 0 offen offset:512")
    a("s_mov_b64 exec, s[50:51]")
    a(f"buffer_store_dwordx4 v[{HP+8}:{HP+11}], v9, s[32:35], 0 offen offset:1024")
    a("s_mov_b64 exec, -1")
    a("s_waitcnt lgkmcnt(0)")
    a("v_pk_add_f32 v[32:33], v[32:33], v[34:35]")
    a("v_mul_f32 v32, s53, v32")
    a("v_mul_f32 v33, s53, v33")
    a("v_fma_f32 v33, -v32, v32, v33")
    a("v_max_f32 v33, 0, v33")
    bf16r(a, 32, 32); bf16r(a, 34, 33)
    a("v_add_f32 v34, 0x3727c5ac, v34")
    bf16r(a, 34, 34)
    a("v_sqrt_f32 v34, v34")
    bf16r(a, 34, 34)
    a("v_rcp_f32 v34, v34")
    LP = 92
    for k in range(12): a(f"v_pk_add_f32 v[{XU+2*k}:{XU+2*k+1}], v[{YV+2*k}:{YV+2*k+1}], v[32:33] op_sel_hi:[1,0] neg_lo:[0,1] neg_hi:[0,1]")
    for k in range(12): a(f"v_cvt_pk_bf16_f32 v{LP+k}, v{XU+2*k}, v{XU+2*k+1}")
    for k in range(12):
        a(f"v_lshlrev_b32 v{XU+2*k}, 16, v{LP+k}")
        a(f"v_and_b32 v{XU+2*k+1}, 0xffff0000, v{LP+k}")
    for k in range(12): a(f"v_pk_mul_f32 v[{XU+2*k}:{XU+2*k+1}], v[{XU+2*k}:{XU+2*k+1}], v[34:35] op_sel_hi:[1,0]")
    for k in range(12): a(f"v_cvt_pk_bf16_f32 v{LP+k}, v{XU+2*k}, v{XU+2*k+1}")
    a("s_mov_b64 exec, s[48:49]")
    a(f"buffer_store_dwordx4 v[{LP}:{LP+3}], v11, s[36:39], 0 offen")
    a(f"buffer_store_dwordx4 v[{LP+4}:{LP+7}], v11, s[36:39], s54 offen")
    a("s_mov_b64 exec, s[50:51]")
    a(f"buffer_store_dwordx4 v[{LP+8}:{LP+11}], v11, s[36:39], s55 offen")
    a("s_mov_b64 exec, -1")
    stamp(a, 5)
    if G.PROF:
        a("s_cmp_eq_u32 s6, 4")
        a("s_cbranch_scc1 L_kb_end")
    stamp_flush(a, 6, 10, 11)
    if prep_n:
        a("s_branch L_kb_end")
        a.label("L_kb_prep")
        a("v_cmp_gt_u32 vcc, 256, v0")
        a("s_cbranch_vccz L_kb_end")
        a(f"s_cmp_ge_u32 s2, {256 + prep_n}")
        a("s_cbranch_scc1 L_kb_end")
        a(f"s_add_u32 s3, s2, {prep_from - 256}")
        G.prep_body(a, 3, "L_kb_end", tag="kb")
    a.label("L_kb_end")
    a("s_endpgm")
    txt = a.text() + emit_table("T_kb", kb_table())
    return txt, kernel_desc(name, 224, 0, 96), f"; @launch kernel={name} grid=({256+prep_n},1,1) block=(320,1,1) lds={TBL+15360}"

if __name__ == "__main__":
    import sys
    if len(sys.argv) > 2: G.PROF = True
    import os
    G.JOB_EVERY = int(os.environ.get('JE', '1')); G.JOB_FAST = int(os.environ.get('JF', '0'))
    if os.environ.get("RAWW", "0") == "1":
        G.PREP_WD_ONLY = True
        open(sys.argv[1], "w").write(G.assemble([gen_ka(prep_n=270), gen_kb(), G.gen_kc2(), G.gen_kd()]))
    else:
        open(sys.argv[1], "w").write(G.assemble([gen_ka(), gen_kb(), G.gen_kc(), (G.gen_kd5() if os.environ.get('KD5', '1') == '1' else G.gen_kd())]))
```

```python
from dsl import *

WS_U = 0x0
WS_H = 0x280000
WS_LN2 = 0x500000
WS_WGU = 0x780000
WS_WD = 0xBC0000
WS_HH = 0xE00000
SZ_ACT = 2048 * 640 * 2
SZ_WGU = 108 * 40 * 1024
SZ_WD = 40 * 54 * 1024
SZ_HH = 128 * 54 * 1024

def srd(a, d, base_lo, base_hi, off, size):
    if off:
        a(f"s_add_u32 s{d}, s{base_lo}, {off}")
        a(f"s_addc_u32 s{d+1}, s{base_hi}, 0")
    else:
        a(f"s_mov_b32 s{d}, s{base_lo}")
        a(f"s_mov_b32 s{d+1}, s{base_hi}")
    a(f"s_mov_b32 s{d+2}, {size}")
    a(f"s_mov_b32 s{d+3}, 0x00020000")

WS_DBG = 0x2000000
PROF = False
JOB_EVERY = 1
JOB_FAST = 0
PREP_WD_ONLY = False
def stamp(a, i):
    if PROF:
        a(f"s_memtime s[{60+2*i}:{61+2*i}]")
        if i == 0: a("s_memrealtime s[90:91]")
def stamp_flush(a, n, ws_lo, ws_hi):
    if not PROF: return
    a("s_memrealtime s[80:81]")
    a("s_waitcnt lgkmcnt(0)")
    srd(a, 84, ws_lo, ws_hi, WS_DBG, 1 << 20)
    a("v_lshrrev_b32 v1, 6, v0")
    a("s_lshl_b32 s82, s2, 2")
    a("v_add_u32 v1, s82, v1")
    a("v_lshlrev_b32 v1, 6, v1")
    for i in range(n):
        a(f"v_mov_b32 v2, s{60+2*i}")
        a(f"buffer_store_dword v2, v1, s[84:87], 0 offen offset:{4*i}")
    a("v_mov_b32 v2, s80")
    a("buffer_store_dword v2, v1, s[84:87], 0 offen offset:60")
    a("v_mov_b32 v2, s90")
    a("buffer_store_dword v2, v1, s[84:87], 0 offen offset:56")

def prep_body(a, wg_sreg, end_label, lds_base=0, tag=''):
    a("s_load_dwordx4 s[4:7], s[0:1], 48")
    a("s_load_dwordx2 s[8:9], s[0:1], 64")
    a("s_load_dwordx2 s[10:11], s[0:1], 88")
    a("v_lshrrev_b32 v1, 6, v0")
    a("v_and_b32 v2, 63, v0")
    a("v_readfirstlane_b32 s12, v1")
    a(f"s_lshl_b32 s13, s{wg_sreg}, 2")
    a("s_add_u32 s13, s13, s12")
    if PREP_WD_ONLY: a("s_add_u32 s13, s13, 1080")
    if PREP_WD_ONLY:
        a(f"s_cmp_ge_u32 s13, 1620")
        a(f"s_cbranch_scc1 L_prep_touch{tag}")
    else:
        a(f"s_cmp_ge_u32 s13, 1620")
        a(f"s_cbranch_scc1 {end_label}")
    a("s_mul_i32 s14, s12, 4864")
    if lds_base: a(f"s_add_u32 s14, s14, {lds_base}")
    a("v_lshrrev_b32 v3, 3, v2")
    a("v_and_b32 v4, 7, v2")
    a("v_lshlrev_b32 v4, 4, v4")
    a("v_mul_u32_u24 v5, 144, v3")
    a("v_add_u32 v5, v5, v4")
    a("v_add_u32 v5, s14, v5")
    a("v_lshrrev_b32 v6, 4, v2")
    a("v_bfe_u32 v7, v2, 2, 2")
    a("v_and_b32 v8, 3, v2")
    a("v_lshlrev_b32 v8, 3, v8")
    a("v_lshlrev_b32 v9, 4, v2")
    a("s_waitcnt lgkmcnt(0)")
    a("s_cmp_ge_u32 s13, 1080")
    a(f"s_cbranch_scc1 L_prep_wd{tag}")
    srd(a, 16, 4, 5, 0, 640 * 1728 * 2)
    srd(a, 20, 6, 7, 0, 640 * 1728 * 2)
    srd(a, 24, 10, 11, WS_WGU, SZ_WGU)
    a("s_mul_i32 s28, s13, 52429")
    a("s_lshr_b32 s28, s28, 21")
    a("s_mul_i32 s29, s28, 40")
    a("s_sub_u32 s29, s13, s29")
    a("s_mul_i32 s30, s29, 55296")
    a("s_lshl_b32 s31, s28, 7")
    a("s_add_u32 s30, s30, s31")
    a("s_add_u32 s31, s30, 27648")
    a("v_mul_u32_u24 v10, 3456, v3")
    a("v_add_u32 v10, v10, v4")
    a("buffer_load_dwordx4 v[12:15], v10, s[16:19], s30 offen")
    a("buffer_load_dwordx4 v[16:19], v10, s[16:19], s31 offen")
    a("buffer_load_dwordx4 v[20:23], v10, s[20:23], s30 offen")
    a("buffer_load_dwordx4 v[24:27], v10, s[20:23], s31 offen")
    a("v_and_b32 v11, 1, v6")
    a("v_lshlrev_b32 v11, 4, v11")
    a("v_lshrrev_b32 v28, 1, v6")
    a("v_lshlrev_b32 v28, 3, v28")
    a("v_add3_u32 v11, v11, v28, v7")
    a("v_mul_u32_u24 v11, 144, v11")
    a("v_add3_u32 v11, v11, v8, s14")
    a("s_mul_i32 s32, s28, 160")
    a("s_add_u32 s32, s32, s29")
    a("s_lshl_b32 s32, s32, 10")
    a("s_waitcnt vmcnt(0)")
    a("ds_write_b128 v5, v[12:15]")
    a("ds_write_b128 v5, v[16:19] offset:1152")
    a("ds_write_b128 v5, v[20:23] offset:2304")
    a("ds_write_b128 v5, v[24:27] offset:3456")
    a("s_waitcnt lgkmcnt(0)")
    for u in range(4):
        a(f"ds_read_b64_tr_b16 v[{12+4*u}:{13+4*u}], v11 offset:{32*u}")
        a(f"ds_read_b64_tr_b16 v[{14+4*u}:{15+4*u}], v11 offset:{32*u+576}")
    for u in range(4):
        a(f"s_waitcnt lgkmcnt({6-2*u})")
        a(f"buffer_store_dwordx4 v[{12+4*u}:{15+4*u}], v9, s[24:27], s32 offen")
        if u < 3: a("s_add_u32 s32, s32, 40960")
    a(f"s_branch {end_label}")
    a.label(f"L_prep_wd{tag}")
    srd(a, 16, 8, 9, 0, 1728 * 640 * 2)
    srd(a, 24, 10, 11, WS_WD, SZ_WD)
    a("s_sub_u32 s13, s13, 1080")
    a("s_mul_i32 s28, s13, 38837")
    a("s_lshr_b32 s28, s28, 21")
    a("s_mul_i32 s29, s28, 54")
    a("s_sub_u32 s29, s13, s29")
    a("s_mul_i32 s30, s29, 40960")
    a("s_lshl_b32 s31, s28, 7")
    a("s_add_u32 s30, s30, s31")
    a("s_add_u32 s31, s30, 10240")
    a("s_add_u32 s33, s30, 20480")
    a("s_add_u32 s34, s30, 30720")
    a("v_mul_u32_u24 v10, 1280, v3")
    a("v_add_u32 v10, v10, v4")
    a("buffer_load_dwordx4 v[12:15], v10, s[16:19], s30 offen")
    a("buffer_load_dwordx4 v[16:19], v10, s[16:19], s31 offen")
    a("buffer_load_dwordx4 v[20:23], v10, s[16:19], s33 offen")
    a("buffer_load_dwordx4 v[24:27], v10, s[16:19], s34 offen")
    a("v_lshrrev_b32 v11, 1, v6")
    a("v_lshlrev_b32 v11, 4, v11")
    a("v_and_b32 v28, 1, v6")
    a("v_lshlrev_b32 v28, 2, v28")
    a("v_add3_u32 v11, v11, v28, v7")
    a("v_mul_u32_u24 v11, 144, v11")
    a("v_add3_u32 v11, v11, v8, s14")
    a("s_mul_i32 s32, s28, 216")
    a("s_add_u32 s32, s32, s29")
    a("s_lshl_b32 s32, s32, 10")
    a("s_waitcnt vmcnt(0)")
    a("ds_write_b128 v5, v[12:15]")
    a("ds_write_b128 v5, v[16:19] offset:1152")
    a("ds_write_b128 v5, v[20:23] offset:2304")
    a("ds_write_b128 v5, v[24:27] offset:3456")
    a("s_waitcnt lgkmcnt(0)")
    for u in range(4):
        a(f"ds_read_b64_tr_b16 v[{12+4*u}:{13+4*u}], v11 offset:{32*u}")
        a(f"ds_read_b64_tr_b16 v[{14+4*u}:{15+4*u}], v11 offset:{32*u+1152}")
    for u in range(4):
        a(f"s_waitcnt lgkmcnt({6-2*u})")
        a(f"buffer_store_dwordx4 v[{12+4*u}:{15+4*u}], v9, s[24:27], s32 offen")
        if u < 3: a("s_add_u32 s32, s32, 55296")
    if PREP_WD_ONLY:
        a(f"s_branch {end_label}")
        a.label(f"L_prep_touch{tag}")
        a(f"s_cmp_ge_u32 s13, 2160")
        a(f"s_cbranch_scc1 {end_label}")
        a("s_sub_u32 s13, s13, 1620")
        a("s_lshl_b32 s14, s13, 12")
        a("v_lshlrev_b32 v9, 4, v2")
        a("s_waitcnt lgkmcnt(0)")
        srd(a, 16, 4, 5, 0, 640 * 1728 * 2)
        srd(a, 20, 6, 7, 0, 640 * 1728 * 2)
        for i in range(4):
            a(f"buffer_load_dwordx4 v[{12+4*i}:{15+4*i}], v9, s[16:19], s14 offen offset:{1024*i}")
        for i in range(4):
            a(f"buffer_load_dwordx4 v[{12+4*i}:{15+4*i}], v9, s[20:23], s14 offen offset:{1024*i}")
        a("s_waitcnt vmcnt(0)")

def gen_prep(name="kp_kernel"):
    a = Asm()
    a.raw(kernel_header(name))
    prep_body(a, 2, "L_kp_end")
    a.label("L_kp_end")
    a("s_endpgm")
    return a.text(), kernel_desc(name, 32, 0, 48), f"; @launch kernel={name} grid=(405,1,1) block=(256,1,1) lds=19456"

def gen_kc(name="kc_kernel"):
    a = Asm()
    a.raw(kernel_header(name))
    NST = 10; NU = 7; SLOT = 28672; NSLOT = 5; KM = 7
    a("s_cmp_ge_u32 s2, 256")
    a("s_cbranch_scc1 L_kc_end")
    stamp(a, 0)
    a("s_load_dwordx2 s[4:5], s[0:1], 88")
    a("v_lshrrev_b32 v1, 6, v0")
    a("v_and_b32 v2, 63, v0")
    a("v_readfirstlane_b32 s6, v1")
    a("v_lshlrev_b32 v3, 4, v2")
    a("s_and_b32 s7, s2, 7")
    a("s_lshr_b32 s8, s2, 3")
    a("s_and_b32 s9, s7, 1")
    a("s_lshl_b32 s9, s9, 3")
    a("s_and_b32 s10, s8, 7")
    a("s_add_u32 s9, s9, s10")
    a("s_lshr_b32 s10, s7, 1")
    a("s_lshl_b32 s10, s10, 2")
    a("s_lshr_b32 s11, s8, 3")
    a("s_add_u32 s10, s10, s11")
    a("s_mul_i32 s10, s10, 27")
    a("s_lshr_b32 s10, s10, 2")
    a("s_lshl_b32 s9, s9, 2")
    a("s_add_u32 s9, s9, s6")
    a("s_mul_i32 s11, s10, 40960")
    a("s_lshl_b32 s31, s6, 10")
    a("s_add_u32 s11, s11, s31")
    a("v_add_u32 v4, s11, v3")
    for u in range(NU):
        a(f"s_mov_b32 s{24+u}, {u*40960}")
    a("s_mul_i32 s32, s9, 40960")
    a("s_waitcnt lgkmcnt(0)")
    srd(a, 12, 4, 5, WS_WGU, SZ_WGU)
    srd(a, 16, 4, 5, WS_LN2, SZ_ACT)
    ACC = 8
    WB = 120
    EP = 184
    LB = 5
    def dma_one(st, u):
        slot = st % NSLOT
        a(f"s_add_u32 m0, s31, {slot*SLOT + u*4096}")
        a(f"buffer_load_dwordx4 v4, s[12:15], s{24+u} offen lds", tag=("dma", st))
        a(f"s_add_u32 s{24+u}, s{24+u}, 4096")
    def act(k):
        if k % 4 == 0 and k > 0:
            a("s_add_u32 s32, s32, 4096")
        a(f"buffer_load_dwordx4 a[{4*k}:{4*k+3}], v3, s[16:19], s32 offen offset:{(k%4)*1024}", tag=("act", k // 4))
    for u in range(NU): dma_one(0, u)
    for k in range(0, 4): act(k)
    jobs = []
    for s_ in range(1, NST):
        jobs += [("d", s_, u, max(0, s_ - (NSLOT - 1))) for u in range(NU)]
        jobs += [("a", s_, i, 0) for i in range(4)]
    bar_passed = [0]; slotno = [0]
    def issue_job():
        if not jobs: return
        kind, s_, i, mb = jobs[0]
        if mb > bar_passed[0]: return
        jobs.pop(0)
        if kind == "a": act(4 * s_ + i)
        else: dma_one(s_, i)
    for _ in range(NU): issue_job()
    srd(a, 20, 4, 5, WS_HH, SZ_HH)
    a("v_bfe_u32 v6, v2, 4, 1")
    a("v_mul_u32_u24 v6, 55296, v6")
    a("v_lshrrev_b32 v7, 5, v2")
    a("v_lshlrev_b32 v7, 8, v7")
    a("v_add_u32 v6, v6, v7")
    a("v_and_b32 v7, 15, v2")
    a("v_lshl_add_u32 v6, v7, 4, v6")
    a("s_mul_i32 s33, s9, 110592")
    a("s_lshl_b32 s34, s10, 9")
    a("s_add_u32 s33, s33, s34")
    a("s_mov_b32 s34, 0xbfb8aa3b")
    a("s_mov_b32 s35, 0xbfb8aa3b")
    a("s_mov_b32 s36, 1.0")
    a("s_mov_b32 s37, 1.0")
    def wread(st, kk, u):
        buf = (st * 4 + kk) % 2
        r = WB + buf * 28 + u * 4
        a(f"ds_read_b128 v[{r}:{r+3}], v{LB} offset:{(u*4+kk)*1024}")
    def mfma(st, kk, u):
        buf = (st * 4 + kk) % 2
        r = WB + buf * 28 + u * 4
        k = st * 4 + kk
        c = "0" if k == 0 else f"v[{ACC+16*u}:{ACC+16*u+15}]"
        a(f"v_mfma_f32_32x32x16_bf16 v[{ACC+16*u}:{ACC+16*u+15}], v[{r}:{r+3}], a[{4*k}:{4*k+3}], {c}")
    stamp(a, 1)
    a.wait_vm({("dma", 0), ("act", 0)})
    a("s_barrier")
    stamp(a, 2)
    a(f"v_mov_b32 v{LB}, v3")
    for u in range(NU): wread(0, 0, u)
    NUM = NST - KM
    NF = 4 * NUM
    RING = 16; DIST = 8
    seq = [(u, f) for u in range(NU) for f in range(NF)]
    def uread(i):
        u, f = seq[i]
        st = KM + f // 4; kk = f % 4
        off = (st % NSLOT) * SLOT + (u * 4 + kk) * 1024
        base = 3
        if off >= 57344: base = 7; off -= 57344
        if off >= 57344: base = 209; off -= 57344
        r = WB + 4 * (i % RING)
        a(f"ds_read_b128 v[{r}:{r+3}], v{base} offset:{off}")
    a("v_add_u32 v7, 57344, v3")
    a("v_add_u32 v209, 114688, v3")
    for st in range(KM):
        for kk in range(4):
            nst, nkk = (st, kk + 1) if kk < 3 else (st + 1, 0)
            if kk == 3 and st in (2, 5): stamp(a, 3 + st // 3)
            last_trans = (st == KM - 1 and kk == 3)
            if kk == 3:
                need_ = {("dma", nst), ("act", nst)}
                if last_trans:
                    assert not jobs
                    need_ = {("dma", q) for q in range(KM, NST)} | {("act", q) for q in range(KM, NST)}
                a.wait_vm(need_, extra="lgkmcnt(0)")
                a("s_barrier")
                bar_passed[0] = nst
                a(f"v_add_u32 v{LB}, {(nst % NSLOT) * SLOT}, v3")
            for u in range(NU):
                if kk != 3:
                    a(f"s_waitcnt lgkmcnt({NU-1})")
                mfma(st, kk, u)
                if not last_trans:
                    wread(nst, nkk, u)
                else:
                    uread(u)
                slotno[0] += 1
                if st < JOB_FAST or slotno[0] % JOB_EVERY == 0: issue_job()
    stamp(a, 5)
    def epi_instrs(u):
        g = ACC + 16 * u; up = g + 8
        t = EP + (u % 2) * 12
        L = []
        for r in range(4): L.append(f"v_pk_mul_f32 v[{t+2*r}:{t+2*r+1}], v[{g+2*r}:{g+2*r+1}], s[34:35]")
        for r in range(8): L.append(f"v_exp_f32 v{t+r}, v{t+r}")
        for r in range(4): L.append(f"v_pk_add_f32 v[{t+2*r}:{t+2*r+1}], v[{t+2*r}:{t+2*r+1}], s[36:37]")
        for r in range(8): L.append(f"v_rcp_f32 v{t+r}, v{t+r}")
        for r in range(4): L.append(f"v_pk_mul_f32 v[{t+2*r}:{t+2*r+1}], v[{t+2*r}:{t+2*r+1}], v[{up+2*r}:{up+2*r+1}]")
        for r in range(4): L.append(f"v_cvt_pk_bf16_f32 v{t+8+r}, v{t+2*r}, v{t+2*r+1}")
        L.append(f"buffer_store_dwordx4 v[{t+8}:{t+11}], v6, s[20:23], s33 offen offset:{u*512}")
        return L
    for i in range(NU, DIST): uread(i)
    pend = []
    for i, (u, f) in enumerate(seq):
        k = KM * 4 + f
        ahead = min(len(seq) - 1, i + DIST - 1) - i
        a(f"s_waitcnt lgkmcnt({ahead})")
        r = WB + 4 * (i % RING)
        a(f"v_mfma_f32_32x32x16_bf16 v[{ACC+16*u}:{ACC+16*u+15}], v[{r}:{r+3}], a[{4*k}:{4*k+3}], v[{ACC+16*u}:{ACC+16*u+15}]")
        if i + DIST < len(seq): uread(i + DIST)
        if f >= 1:
            for _ in range(3):
                if pend: a(pend.pop(0))
        if f == NF - 1:
            while pend: a(pend.pop(0))
            pend = epi_instrs(u)
    stamp(a, 6)
    while pend: a(pend.pop(0))
    stamp(a, 7)
    stamp_flush(a, 8, 4, 5)
    a.label("L_kc_end")
    a("s_endpgm")
    return a.text(), kernel_desc(name, 212, 160, 96), f"; @launch kernel={name} grid=(256,1,1) block=(256,1,1) lds={SLOT*NSLOT}"

def gen_kc2(name="kc_kernel"):
    a = Asm()
    a.raw(kernel_header(name))
    NST = 10; NU = 7; MOFF = 14336 + 128; SLOT = 28800; NSLOT = 5; KM = 8
    a("s_cmp_ge_u32 s2, 256")
    a("s_cbranch_scc1 L_kc_end")
    stamp(a, 0)
    a("s_load_dwordx2 s[4:5], s[0:1], 88")
    a("s_load_dwordx4 s[40:43], s[0:1], 48")
    a("v_lshrrev_b32 v1, 6, v0")
    a("v_and_b32 v2, 63, v0")
    a("v_readfirstlane_b32 s6, v1")
    a("v_lshlrev_b32 v3, 4, v2")
    a("s_and_b32 s7, s2, 7")
    a("s_lshr_b32 s8, s2, 3")
    a("s_and_b32 s9, s7, 1")
    a("s_lshl_b32 s9, s9, 3")
    a("s_and_b32 s10, s8, 7")
    a("s_add_u32 s9, s9, s10")
    a("s_lshr_b32 s10, s7, 1")
    a("s_lshl_b32 s10, s10, 2")
    a("s_lshr_b32 s11, s8, 3")
    a("s_add_u32 s10, s10, s11")
    a("s_mul_i32 s10, s10, 27")
    a("s_lshr_b32 s10, s10, 2")
    a("s_lshl_b32 s9, s9, 2")
    a("s_add_u32 s9, s9, s6")
    a("v_mul_u32_u24 v4, 0x4925, v2")
    a("v_lshrrev_b32 v4, 18, v4")
    a("v_mul_u32_u24 v7, 14, v4")
    a("v_sub_u32 v7, v2, v7")
    a("v_mul_u32_u24 v4, 3456, v4")
    a("v_lshl_add_u32 v4, v7, 4, v4")
    a("s_mul_i32 s24, s6, 13824")
    a("s_lshl_b32 s25, s10, 5")
    a("s_add_u32 s24, s24, s25")
    a("s_mul_i32 s31, s6, 896")
    a("s_mov_b32 s26, -1")
    a("s_mov_b32 s27, 0x00ffffff")
    a("v_bfe_u32 v7, v2, 4, 1")
    a(f"v_mul_u32_u24 v8, {MOFF}, v7")
    a("v_lshrrev_b32 v7, 5, v2")
    a("v_mul_u32_u24 v7, 1792, v7")
    a("v_add_u32 v8, v8, v7")
    a("v_bfe_u32 v7, v2, 2, 2")
    a("v_mul_u32_u24 v7, 224, v7")
    a("v_add_u32 v8, v8, v7")
    a("v_and_b32 v7, 3, v2")
    a("v_lshl_add_u32 v208, v7, 3, v8")
    a("s_mul_i32 s32, s9, 40960")
    a("s_waitcnt lgkmcnt(0)")
    srd(a, 12, 40, 41, 0, 640 * 1728 * 2)
    srd(a, 44, 42, 43, 0, 640 * 1728 * 2)
    srd(a, 16, 4, 5, WS_LN2, SZ_ACT)
    ACC = 8
    WB = 120
    EP = 184
    LB = 5
    def dma_one(st, u):
        slot = st % NSLOT
        a("s_mov_b64 exec, s[26:27]")
        a(f"s_add_u32 m0, s31, {slot*SLOT + u*3584}")
        a(f"buffer_load_dwordx4 v4, s[12:15], s24 offen lds", tag=("dma", st))
        a(f"s_add_u32 m0, s31, {slot*SLOT + MOFF + u*3584}")
        a(f"buffer_load_dwordx4 v4, s[44:47], s24 offen lds", tag=("dma", st))
        a("s_mov_b64 exec, -1")
        a("s_add_u32 s24, s24, 55296")
    def act(k):
        if k % 4 == 0 and k > 0:
            a("s_add_u32 s32, s32, 4096")
        a(f"buffer_load_dwordx4 a[{4*k}:{4*k+3}], v3, s[16:19], s32 offen offset:{(k%4)*1024}", tag=("act", k // 4))
    for u in range(4): dma_one(0, u)
    for k in range(0, 4): act(k)
    jobs = []
    for s_ in range(1, NST):
        jobs += [("d", s_, u, max(0, s_ - (NSLOT - 1))) for u in range(4)]
        jobs += [("a", s_, i, 0) for i in range(4)]
    bar_passed = [0]
    def issue_job():
        if not jobs: return
        kind, s_, i, mb = jobs[0]
        if mb > bar_passed[0]: return
        jobs.pop(0)
        if kind == "a": act(4 * s_ + i)
        else: dma_one(s_, i)
    for _ in range(4): issue_job()
    srd(a, 20, 4, 5, WS_HH, SZ_HH)
    a("v_bfe_u32 v6, v2, 4, 1")
    a("v_mul_u32_u24 v6, 55296, v6")
    a("v_lshrrev_b32 v7, 5, v2")
    a("v_lshlrev_b32 v7, 8, v7")
    a("v_add_u32 v6, v6, v7")
    a("v_and_b32 v7, 15, v2")
    a("v_lshl_add_u32 v6, v7, 4, v6")
    a("s_mul_i32 s33, s9, 110592")
    a("s_lshl_b32 s34, s10, 9")
    a("s_add_u32 s33, s33, s34")
    a("s_mov_b32 s34, 0xbfb8aa3b")
    a("s_mov_b32 s35, 0xbfb8aa3b")
    a("s_mov_b32 s36, 1.0")
    a("s_mov_b32 s37, 1.0")
    def wread(st, kk, u):
        buf = (st * 4 + kk) % 2
        r = WB + buf * 28 + u * 4
        a(f"ds_read_b64_tr_b16 v[{r}:{r+1}], v{LB} offset:{kk*3584 + u*32}")
        a(f"ds_read_b64_tr_b16 v[{r+2}:{r+3}], v{LB} offset:{kk*3584 + 896 + u*32}")
    def mfma(st, kk, u):
        buf = (st * 4 + kk) % 2
        r = WB + buf * 28 + u * 4
        k = st * 4 + kk
        c = "0" if k == 0 else f"v[{ACC+16*u}:{ACC+16*u+15}]"
        a(f"v_mfma_f32_32x32x16_bf16 v[{ACC+16*u}:{ACC+16*u+15}], v[{r}:{r+3}], a[{4*k}:{4*k+3}], {c}")
    stamp(a, 1)
    a.wait_vm({("dma", 0), ("act", 0)})
    a("s_barrier")
    stamp(a, 2)
    a(f"v_mov_b32 v{LB}, v208")
    for u in range(NU): wread(0, 0, u)
    NUM = NST - KM
    NF = 4 * NUM
    UB = [WB, WB + 32]
    def uread(u, f):
        st = KM + f // 4; kk = f % 4
        base = 7
        off = (st % NSLOT) * SLOT + kk * 3584 + u * 32 - (KM % NSLOT) * SLOT
        assert 0 <= off < 65536 - 896
        r = UB[u % 2] + 4 * f
        a(f"ds_read_b64_tr_b16 v[{r}:{r+1}], v{base} offset:{off}")
        a(f"ds_read_b64_tr_b16 v[{r+2}:{r+3}], v{base} offset:{off + 896}")
    a(f"v_add_u32 v7, {(KM % NSLOT) * SLOT}, v208")
    for st in range(KM):
        for kk in range(4):
            nst, nkk = (st, kk + 1) if kk < 3 else (st + 1, 0)
            if kk == 3 and st in (2, 5): stamp(a, 3 + st // 3)
            last_trans = (st == KM - 1 and kk == 3)
            if kk == 3:
                need_ = {("dma", nst), ("act", nst)}
                if last_trans:
                    assert not jobs
                    need_ = {("dma", q) for q in range(KM, NST)} | {("act", q) for q in range(KM, NST)}
                a.wait_vm(need_, extra="lgkmcnt(0)")
                a("s_barrier")
                bar_passed[0] = nst
                a(f"v_add_u32 v{LB}, {(nst % NSLOT) * SLOT}, v208")
            for u in range(NU):
                if kk != 3:
                    a(f"s_waitcnt lgkmcnt({2*(NU-1)})")
                mfma(st, kk, u)
                if not last_trans:
                    wread(nst, nkk, u)
                else:
                    uread(0, u)
                issue_job()
    stamp(a, 5)
    def epi_instrs(u):
        g = ACC + 16 * u; up = g + 8
        t = EP + (u % 2) * 12
        L = []
        for r in range(4): L.append(f"v_pk_mul_f32 v[{t+2*r}:{t+2*r+1}], v[{g+2*r}:{g+2*r+1}], s[34:35]")
        for r in range(8): L.append(f"v_exp_f32 v{t+r}, v{t+r}")
        for r in range(4): L.append(f"v_pk_add_f32 v[{t+2*r}:{t+2*r+1}], v[{t+2*r}:{t+2*r+1}], s[36:37]")
        for r in range(8): L.append(f"v_rcp_f32 v{t+r}, v{t+r}")
        for r in range(4): L.append(f"v_pk_mul_f32 v[{t+2*r}:{t+2*r+1}], v[{t+2*r}:{t+2*r+1}], v[{up+2*r}:{up+2*r+1}]")
        for r in range(4): L.append(f"v_cvt_pk_bf16_f32 v{t+8+r}, v{t+2*r}, v{t+2*r+1}")
        L.append(f"buffer_store_dwordx4 v[{t+8}:{t+11}], v6, s[20:23], s33 offen offset:{u*512}")
        return L
    for f in range(NU, NF): uread(0, f)
    pend = []
    for u in range(NU):
        b = UB[u % 2]
        for f in range(NF):
            k = KM * 4 + f
            a(f"s_waitcnt lgkmcnt({2*((NF-1-f) + (f if u + 1 < NU else 0))})")
            a(f"v_mfma_f32_32x32x16_bf16 v[{ACC+16*u}:{ACC+16*u+15}], v[{b+4*f}:{b+4*f+3}], a[{4*k}:{4*k+3}], v[{ACC+16*u}:{ACC+16*u+15}]")
            if u + 1 < NU: uread(u + 1, f)
            if f >= 1:
                for _ in range(5):
                    if pend: a(pend.pop(0))
        while pend: a(pend.pop(0))
        pend = epi_instrs(u)
    stamp(a, 6)
    while pend: a(pend.pop(0))
    stamp(a, 7)
    stamp_flush(a, 8, 4, 5)
    a.label("L_kc_end")
    a("s_endpgm")
    return a.text(), kernel_desc(name, 212, 160, 96), f"; @launch kernel={name} grid=(256,1,1) block=(256,1,1) lds={SLOT*NSLOT}"

def gen_kd(name="kd_kernel"):
    a = Asm()
    a.raw(kernel_header(name))
    P = 4; NS = 14
    a("s_cmp_ge_u32 s2, 256")
    a("s_cbranch_scc1 L_kd_end")
    stamp(a, 0)
    a("s_load_dwordx2 s[4:5], s[0:1], 88")
    a("s_load_dwordx2 s[36:37], s[0:1], 72")
    a("v_lshrrev_b32 v1, 6, v0")
    a("v_and_b32 v2, 63, v0")
    a("v_readfirstlane_b32 s6, v1")
    a("v_lshlrev_b32 v3, 4, v2")
    a("s_and_b32 s7, s2, 7")
    a("s_lshr_b32 s8, s2, 3")
    a("s_and_b32 s9, s7, 3")
    a("s_lshl_b32 s9, s9, 3")
    a("s_and_b32 s10, s8, 7")
    a("s_add_u32 s9, s9, s10")
    a("s_lshr_b32 s10, s7, 2")
    a("s_lshl_b32 s10, s10, 2")
    a("s_lshr_b32 s11, s8, 3")
    a("s_add_u32 s10, s10, s11")
    a("s_mul_i32 s11, s6, 14")
    a("s_cmp_eq_u32 s6, 3")
    a("s_cselect_b32 s32, 1, 0")
    a("s_sub_u32 s11, s11, s32")
    a("s_lshl_b32 s11, s11, 10")
    a("s_waitcnt lgkmcnt(0)")
    srd(a, 12, 4, 5, WS_WD, SZ_WD)
    srd(a, 16, 4, 5, WS_HH, SZ_HH)
    srd(a, 20, 4, 5, WS_H, SZ_ACT)
    srd(a, 24, 36, 37, 0, SZ_ACT)
    a("s_mul_i32 s28, s10, 276480")
    a("s_mul_i32 s29, s9, 221184")
    for cu in range(5):
        a(f"v_add_u32 v{4+cu}, s28, v3")
        if cu < 4: a("s_add_u32 s28, s28, 55296")
    for rt in range(4):
        a(f"s_add_u32 s30, s6, {rt}")
        a("s_and_b32 s30, s30, 3")
        a("s_mul_i32 s30, s30, 55296")
        a("s_add_u32 s30, s30, s29")
        a(f"v_add_u32 v{9+rt}, s30, v3")
    ACC = 16
    BUF = 96
    def load(st, i):
        b = BUF + (st % P) * 36
        if st % 4 == 0 and i == 0 and st > 0:
            a("s_add_u32 s11, s11, 4096")
        off = (st % 4) * 1024
        if i < 5:
            a(f"buffer_load_dwordx4 v[{b+4*i}:{b+4*i+3}], v{4+i}, s[12:15], s11 offen offset:{off}", tag=st)
        else:
            rt = i - 5
            a(f"buffer_load_dwordx4 v[{b+20+4*rt}:{b+20+4*rt+3}], v{9+rt}, s[16:19], s11 offen offset:{off}", tag=st)
    for st in range(P - 1):
        for i in range(9): load(st, i)
    for r in range(80): a(f"v_mov_b32 v{ACC+r}, 0")
    a("v_and_b32 v13, 15, v2")
    a("s_lshl_b32 s30, s9, 6")
    a("s_lshl_b32 s31, s6, 4")
    a("s_add_u32 s30, s30, s31")
    a("v_add_u32 v13, s30, v13")
    a("v_mul_u32_u24 v13, 1280, v13")
    a("v_lshrrev_b32 v14, 4, v2")
    a("v_lshlrev_b32 v14, 3, v14")
    a("s_mul_i32 s31, s10, 160")
    a("v_add3_u32 v13, v13, v14, s31")
    for st in range(NS):
        b = BUF + (st % P) * 36
        if st == NS - 1:
            a.wait_vm({st})
            a("s_cmp_ge_u32 s6, 2")
            a("s_cbranch_scc1 L_kd_skip")
        else:
            if st == 0: stamp(a, 1)
            a.wait_vm({st})
            if st in (0, 4, 8, 12): stamp(a, 2 + st // 4)
        n = 0
        for cu in range(5):
            for rt in range(4):
                t = ACC + (cu * 4 + rt) * 4
                a(f"v_mfma_f32_16x16x32_bf16 v[{t}:{t+3}], v[{b+4*cu}:{b+4*cu+3}], v[{b+20+4*rt}:{b+20+4*rt+3}], v[{t}:{t+3}]")
                if n % 2 == 0 and n // 2 < 9 and st + P - 1 < NS:
                    load(st + P - 1, n // 2)
                n += 1
    a.label("L_kd_skip")
    stamp(a, 6)
    HB = BUF
    a("s_nop 7")
    for cu in range(5):
        a(f"buffer_load_dwordx2 v[{HB+2*cu}:{HB+2*cu+1}], v13, s[20:23], 0 offen offset:{32*cu}", tag="h")
    for k in range(1, 4):
        a(f"s_add_u32 s32, s6, {k}")
        a("s_and_b32 s32, s32, 3")
        a("s_mul_i32 s32, s32, 15360")
        a(f"v_add_u32 v14, s32, v3")
        for cu in range(5):
            t = ACC + (cu * 4 + k) * 4
            a(f"ds_write_b128 v14, v[{t}:{t+3}] offset:{((k-1)*5+cu)*1024}")
    a("s_mul_i32 s32, s6, 15360")
    a("v_add_u32 v14, s32, v3")
    a("s_waitcnt lgkmcnt(0)")
    a("s_barrier")
    RB = 112
    for k in range(3):
        for cu in range(5):
            r = RB + (k * 5 + cu) * 4
            a(f"ds_read_b128 v[{r}:{r+3}], v14 offset:{(k*5+cu)*1024}")
    def OWNR(cu): return ACC + cu * 16
    for k in range(3):
        a(f"s_waitcnt lgkmcnt({10 - 5*k})")
        for cu in range(5):
            r = RB + (k * 5 + cu) * 4; o = OWNR(cu)
            a(f"v_pk_add_f32 v[{o}:{o+1}], v[{o}:{o+1}], v[{r}:{r+1}]")
            a(f"v_pk_add_f32 v[{o+2}:{o+3}], v[{o+2}:{o+3}], v[{r+2}:{r+3}]")
    a.wait_vm({"h"})
    for cu in range(5):
        o = OWNR(cu); h = HB + 2 * cu; t = RB + cu * 8
        a(f"v_cvt_pk_bf16_f32 v{t}, v{o}, v{o+1}")
        a(f"v_cvt_pk_bf16_f32 v{t+1}, v{o+2}, v{o+3}")
        a(f"v_lshlrev_b32 v{t+2}, 16, v{t}")
        a(f"v_and_b32 v{t+3}, 0xffff0000, v{t}")
        a(f"v_lshlrev_b32 v{t+4}, 16, v{t+1}")
        a(f"v_and_b32 v{t+5}, 0xffff0000, v{t+1}")
        a(f"v_lshlrev_b32 v{o}, 16, v{h}")
        a(f"v_and_b32 v{o+1}, 0xffff0000, v{h}")
        a(f"v_lshlrev_b32 v{o+2}, 16, v{h+1}")
        a(f"v_and_b32 v{o+3}, 0xffff0000, v{h+1}")
        for q in range(4): a(f"v_add_f32 v{o+q}, v{o+q}, v{t+2+q}")
        a(f"v_cvt_pk_bf16_f32 v{t}, v{o}, v{o+1}")
        a(f"v_cvt_pk_bf16_f32 v{t+1}, v{o+2}, v{o+3}")
        a(f"buffer_store_dwordx2 v[{t}:{t+1}], v13, s[24:27], 0 offen offset:{32*cu}")
    stamp(a, 7)
    stamp_flush(a, 8, 4, 5)
    a.label("L_kd_end")
    a("s_endpgm")
    return a.text(), kernel_desc(name, 240, 0, 96), f"; @launch kernel={name} grid=(256,1,1) block=(256,1,1) lds=61440"

def gen_kd5(name="kd_kernel"):
    a = Asm()
    a.raw(kernel_header(name))
    NST = 11; SLOT = 20480; NSLOT = 4; PA = 3
    def nsteps(st): return 5 if st < NST - 1 else 4
    a("s_cmp_ge_u32 s2, 256")
    a("s_cbranch_scc1 L_kd_end")
    stamp(a, 0)
    a("s_load_dwordx2 s[4:5], s[0:1], 88")
    a("s_load_dwordx2 s[36:37], s[0:1], 72")
    a("v_lshrrev_b32 v1, 6, v0")
    a("v_and_b32 v2, 63, v0")
    a("v_readfirstlane_b32 s6, v1")
    a("v_lshlrev_b32 v3, 4, v2")
    a("s_and_b32 s7, s2, 7")
    a("s_lshr_b32 s8, s2, 3")
    a("s_and_b32 s9, s7, 3")
    a("s_lshl_b32 s9, s9, 3")
    a("s_and_b32 s10, s8, 7")
    a("s_add_u32 s9, s9, s10")
    a("s_lshr_b32 s10, s7, 2")
    a("s_lshl_b32 s10, s10, 2")
    a("s_lshr_b32 s11, s8, 3")
    a("s_add_u32 s10, s10, s11")
    a("s_mul_i32 s28, s10, 5")
    a("s_add_u32 s28, s28, s6")
    a("s_mul_i32 s28, s28, 55296")
    a("v_add_u32 v4, s28, v3")
    a("s_mul_i32 s29, s9, 221184")
    a("s_lshl_b32 s30, s6, 10")
    a("s_add_u32 s29, s29, s30")
    for i in range(4):
        a(f"v_add_u32 v{5+i}, s29, v3")
        if i < 3: a("s_add_u32 s29, s29, 55296")
    a("s_lshl_b32 s31, s6, 12")
    a("s_mov_b32 s32, 0")
    a("s_mov_b32 s33, 0")
    a("s_waitcnt lgkmcnt(0)")
    srd(a, 12, 4, 5, WS_WD, SZ_WD)
    srd(a, 16, 4, 5, WS_HH, SZ_HH)
    ACC = 16
    AB = 32
    BB = 92
    LB = 9
    def dma(st, i):
        a(f"s_add_u32 m0, s31, {(st % NSLOT)*SLOT + i*1024}")
        a(f"buffer_load_dwordx4 v{5+i}, s[16:19], s32 offen lds", tag=("d", st))
        if i == 3: a("s_add_u32 s32, s32, 5120")
    def aload(st, j):
        r = AB + ((st % PA) * 5 + j) * 4
        off = j * 1024
        if j == 4:
            a("s_add_u32 s34, s33, 4096")
            a(f"buffer_load_dwordx4 v[{r}:{r+3}], v4, s[12:15], s34 offen", tag=("a", st))
        else:
            a(f"buffer_load_dwordx4 v[{r}:{r+3}], v4, s[12:15], s33 offen offset:{off}", tag=("a", st))
        if j == nsteps(st) - 1: a("s_add_u32 s33, s33, 5120")
    jobs = []
    for st in range(NST):
        jobs += [("d", st, i, max(0, st - (NSLOT - 1))) for i in range(4)]
        jobs += [("a", st, j, st - (PA - 1)) for j in range(nsteps(st))]
    bar_passed = [0]; cur_stage_done = [-1]
    def issue_job():
        if not jobs: return False
        kind, st, i, mb = jobs[0]
        if kind == "d":
            if mb > bar_passed[0]: return False
        else:
            if st - PA > cur_stage_done[0]: return False
        jobs.pop(0)
        dma(st, i) if kind == "d" else aload(st, i)
        return True
    for _ in range(18): issue_job()
    srd(a, 20, 4, 5, WS_H, SZ_ACT)
    srd(a, 24, 36, 37, 0, SZ_ACT)
    a("v_and_b32 v13, 15, v2")
    a("s_lshl_b32 s30, s9, 6")
    a("v_add_u32 v13, s30, v13")
    a("v_mul_u32_u24 v13, 1280, v13")
    a("v_lshrrev_b32 v14, 4, v2")
    a("v_lshlrev_b32 v14, 3, v14")
    a("s_mul_i32 s30, s10, 160")
    a("s_lshl_b32 s35, s6, 5")
    a("s_add_u32 s30, s30, s35")
    a("v_add3_u32 v13, v13, v14, s30")
    a("s_mov_b32 s38, 20480")
    a("s_mov_b32 s39, 40960")
    a("s_mov_b32 s40, 61440")
    def bread(g, j, rt):
        r = BB + (g % 2) * 16 + rt * 4
        a(f"ds_read_b128 v[{r}:{r+3}], v{LB} offset:{j*4096 + rt*1024}")
    stamp(a, 1)
    a.wait_vm({("d", 0), ("a", 0)})
    a("s_barrier")
    stamp(a, 2)
    a(f"v_mov_b32 v{LB}, v3")
    for rt in range(4): bread(0, 0, rt)
    g = 0
    HB = 124
    for st in range(NST):
        ns = nsteps(st)
        for j in range(ns):
            last_of_stage = (j == ns - 1)
            has_next = not (st == NST - 1 and last_of_stage)
            if last_of_stage and has_next:
                if st in (3, 7): stamp(a, 3 + st // 4)
                a.wait_vm({("d", st + 1), ("a", st + 1)}, extra="lgkmcnt(0)")
                a("s_barrier")
                bar_passed[0] = st + 1
                a(f"v_add_u32 v{LB}, {((st + 1) % NSLOT) * SLOT}, v3")
            if st == NST - 1 and j == 0:
                for rt in range(4):
                    so = ["0", "s38", "s39", "s40"][rt]
                    a(f"buffer_load_dwordx2 v[{HB+2*rt}:{HB+2*rt+1}], v13, s[20:23], {so} offen", tag="h")
            ar = AB + ((st % PA) * 5 + j) * 4
            for rt in range(4):
                if not (last_of_stage and has_next):
                    a(f"s_waitcnt lgkmcnt({3 if has_next else 3 - rt})")
                t = ACC + 4 * rt; b = BB + (g % 2) * 16 + rt * 4
                c = "0" if g == 0 else f"v[{t}:{t+3}]"
                a(f"v_mfma_f32_16x16x32_bf16 v[{t}:{t+3}], v[{ar}:{ar+3}], v[{b}:{b+3}], {c}")
                if has_next:
                    nj = 0 if last_of_stage else j + 1
                    bread(g + 1, nj, rt)
                if last_of_stage and rt == 3: cur_stage_done[0] = st
                issue_job()
            g += 1
    assert not jobs
    stamp(a, 6)
    a.wait_vm({"h"})
    for rt in range(4):
        o = ACC + 4 * rt; h = HB + 2 * rt; t = 32 + rt * 8
        a(f"v_cvt_pk_bf16_f32 v{t}, v{o}, v{o+1}")
        a(f"v_cvt_pk_bf16_f32 v{t+1}, v{o+2}, v{o+3}")
        a(f"v_lshlrev_b32 v{t+2}, 16, v{t}")
        a(f"v_and_b32 v{t+3}, 0xffff0000, v{t}")
        a(f"v_lshlrev_b32 v{t+4}, 16, v{t+1}")
        a(f"v_and_b32 v{t+5}, 0xffff0000, v{t+1}")
        a(f"v_lshlrev_b32 v{o}, 16, v{h}")
        a(f"v_and_b32 v{o+1}, 0xffff0000, v{h}")
        a(f"v_lshlrev_b32 v{o+2}, 16, v{h+1}")
        a(f"v_and_b32 v{o+3}, 0xffff0000, v{h+1}")
        a(f"v_pk_add_f32 v[{o}:{o+1}], v[{o}:{o+1}], v[{t+2}:{t+3}]")
        a(f"v_pk_add_f32 v[{o+2}:{o+3}], v[{o+2}:{o+3}], v[{t+4}:{t+5}]")
        a(f"v_cvt_pk_bf16_f32 v{t}, v{o}, v{o+1}")
        a(f"v_cvt_pk_bf16_f32 v{t+1}, v{o+2}, v{o+3}")
        so = ["0", "s38", "s39", "s40"][rt]
        a(f"buffer_store_dwordx2 v[{t}:{t+1}], v13, s[24:27], {so} offen")
    stamp(a, 7)
    if PROF:
        a("s_cmp_eq_u32 s6, 4")
        a("s_cbranch_scc1 L_kd_end")
    stamp_flush(a, 8, 4, 5)
    a.label("L_kd_end")
    a("s_endpgm")
    return a.text(), kernel_desc(name, 132, 0, 96), f"; @launch kernel={name} grid=(256,1,1) block=(320,1,1) lds={SLOT*NSLOT}"

def assemble(parts):
    s = "\n".join(p[2] for p in parts) + "\n"
    s += '.amdgcn_target "amdgcn-amd-amdhsa--gfx950"\n.text\n'
    for p in parts: s += p[0]
    s += '.section .rodata,"a"\n'
    for p in parts: s += ".p2align 6\n" + p[1]
    return s

if __name__ == "__main__":
    import sys
    if len(sys.argv) > 2: PROF = True
    open(sys.argv[1], "w").write(assemble([gen_prep(), gen_kc(), gen_kd()]))
```
